```python
import torch

def _softmax(x, axis=-1):
    return torch.softmax(x, dim=axis)

def _gelu(x):
    return torch.nn.functional.gelu(x, approximate='tanh')

def _silu(x):
    return torch.nn.functional.silu(x)

def _sigmoid(x):
    return torch.sigmoid(x)

def _layernorm(x, axis=-1, eps=1e-05):
    m = x.mean(dim=axis, keepdim=True)
    v = x.var(dim=axis, keepdim=True, unbiased=False)
    return (x - m) / torch.sqrt(v + eps)

def _scatter_add(tgt, idx, src, axis=0):
    return tgt.clone().index_add_(axis, idx, src)

def _segment_sum(src, seg, n):
    out = torch.zeros((n,) + src.shape[1:], dtype=src.dtype)
    return out.index_add_(0, seg, src)

def _pad(x, pw):
    flat = tuple((v for pair in reversed(pw) for v in pair))
    return torch.nn.functional.pad(x, flat)
kernel_name = 'interleave_layers__memory_aug_recurrent_mem_tr__glu_gated_swiglu__prompt'

def setup_inputs():

    _w = lambda a: (lambda t: t.to(torch.bfloat16) if t.is_floating_point() else t)(torch.as_tensor(a))

    def _A_setup():
        B, S, Dm = (1, 2048, 512)
        H, Dh = (32, 128)
        M, seg = (8, 32)
        seg = min(seg, S)
        S = S // seg * seg
        return {'x': _w((lambda *s: torch.randn(*s, dtype=torch.bfloat16) * 0.05)(B, S, Dm)), 'mem0': _w((lambda *s: torch.randn(*s, dtype=torch.bfloat16) * 0.2)(B, M, Dm)), 'Wq': _w((lambda *s: torch.randn(*s, dtype=torch.bfloat16) * 1.6)(Dm, H, Dh) * Dm ** (-0.5)), 'Wk': _w((lambda *s: torch.randn(*s, dtype=torch.bfloat16) * 1.6)(Dm, H, Dh) * Dm ** (-0.5)), 'Wv': _w((lambda *s: torch.randn(*s, dtype=torch.bfloat16) * 0.2)(Dm, H, Dh) * Dm ** (-0.5)), 'Wo': _w((lambda *s: torch.randn(*s, dtype=torch.bfloat16) * 0.2)(H, Dh, Dm) * (H * Dh) ** (-0.5)), 'seg_len': seg}
    _A_in = _A_setup()

    def _B_setup():
        B, S, D, F = (1, 2048, 512, 1792)
        return {'x': _w((lambda *s: torch.randn(*s, dtype=torch.bfloat16) * 0.05)(B, S, D)), 'w1': _w((lambda *s: torch.randn(*s, dtype=torch.bfloat16) * 0.2)(D, F) * (2.0 / D) ** 0.5), 'w3': _w((lambda *s: torch.randn(*s, dtype=torch.bfloat16) * 0.2)(D, F) * (2.0 / D) ** 0.5), 'w2': _w((lambda *s: torch.randn(*s, dtype=torch.bfloat16) * 0.2)(F, D) * (2.0 / F) ** 0.5)}
    _B_in = _B_setup()
    return {'A_x': _A_in['x'], 'A_mem0': _A_in['mem0'], 'A_Wq': _A_in['Wq'], 'A_Wk': _A_in['Wk'], 'A_Wv': _A_in['Wv'], 'A_Wo': _A_in['Wo'], 'A_seg_len': _A_in['seg_len'], 'B_x': _B_in['x'], 'B_w1': _B_in['w1'], 'B_w3': _B_in['w3'], 'B_w2': _B_in['w2']}

def reference(A_x, A_mem0, A_Wq, A_Wk, A_Wv, A_Wo, A_seg_len, B_x, B_w1, B_w3, B_w2):

    def _A_ref(x, mem0, Wq, Wk, Wv, Wo, seg_len):
        B, S, Dm = x.shape
        H, Dh = (Wq.shape[1], Wq.shape[2])
        M = mem0.shape[1]
        scale = Dh ** (-0.5)
        n_seg = S // seg_len
        L = M + seg_len
        idx = torch.arange(L)
        mask = (idx[:, None] < M) | (idx[:, None] >= idx[None, :])
        mem = mem0
        outs = []
        for s in range(n_seg):
            xs = x[:, s * seg_len:(s + 1) * seg_len, :].clone()
            h = torch.concatenate([mem, xs], axis=1)
            q = torch.einsum('btd,dhe->bhte', h, Wq)
            k = torch.einsum('btd,dhe->bhte', h, Wk)
            v = torch.einsum('btd,dhe->bhte', h, Wv)
            scores = torch.einsum('bhqe,bhke->bhqk', q, k) * scale
            scores = torch.where(mask[None, None], scores, -1000000000.0)
            p = _softmax(scores, axis=-1)
            o = torch.einsum('bhqk,bhke->bhqe', p, v)
            o = torch.einsum('bhte,hed->btd', o, Wo)
            mem = o[:, :M, :].clone()
            outs.append(o[:, M:, :])
        return torch.concatenate(outs, axis=1)

    def _B_ref(x, w1, w3, w2):
        gate = torch.einsum('bsd,df->bsf', x, w1)
        up = torch.einsum('bsd,df->bsf', x, w3)
        h = _silu(gate) * up
        out = torch.einsum('bsf,fd->bsd', h, w2)
        return out
    x = A_x
    x = x + _A_ref(_layernorm(x, axis=-1), A_mem0, A_Wq, A_Wk, A_Wv, A_Wo, A_seg_len)
    x = x + _B_ref(_layernorm(x, axis=-1), B_w1, B_w3, B_w2)
    x = x + _A_ref(_layernorm(x, axis=-1), A_mem0, A_Wq, A_Wk, A_Wv, A_Wo, A_seg_len)
    x = x + _B_ref(_layernorm(x, axis=-1), B_w1, B_w3, B_w2)
    return x
```

```python
NAME = 'interleave_layers__memory_aug_recurrent_mem_tr__glu_gated_swiglu__prompt'
class Asm:
    def __init__(self):
        self.lines = []
        self.uid = 0
    def __call__(self, s):
        for l in s.split('\n'):
            l = l.strip()
            if l: self.lines.append(('' if l.endswith(':') else '    ') + l)
    def label(self, base):
        self.uid += 1
        return f'{base}_{self.uid}'
    def text(self):
        return '\n'.join(self.lines) + '\n'

def kernel_desc(name, vgpr=512, accum=256, sgpr=102):
    return f'''.amdhsa_kernel {name}
  .amdhsa_next_free_vgpr {vgpr}
  .amdhsa_next_free_sgpr {sgpr}
  .amdhsa_accum_offset {accum}
  .amdhsa_group_segment_fixed_size 0
  .amdhsa_kernarg_size 112
  .amdhsa_user_sgpr_count 2
  .amdhsa_user_sgpr_kernarg_segment_ptr 1
  .amdhsa_system_sgpr_workgroup_id_x 1
  .amdhsa_float_denorm_mode_32 3
.end_amdhsa_kernel
'''

def single_kernel_file(body, grid, block, lds, vgpr=512, accum=256):
    k = NAME + '_kernel'
    return f'''; @launch grid=({grid},1,1) block=({block},1,1) lds={lds}
.amdgcn_target "amdgcn-amd-amdhsa--gfx950"
.text
.globl {k}
.p2align 8
.type {k},@function
{k}:
{body}
.section .rodata,"a"
.p2align 6
{kernel_desc(k, vgpr, accum)}'''
```

```python
import math, struct
from common import *
def f32bits(x): return struct.unpack('<I', struct.pack('<f', x))[0]
C1 = f32bits(128 ** -0.5 * math.log2(math.e))

def emit_att(a, local=True, nseg=64, hook=None, npre=6):
    lb = a.label
    t0, t1 = 's42', 's43'
    sI, sNeed, sKV, sQ, sKVM, sO, sFq, sFm, sFout, sU, sLds = ['s%d' % r for r in range(28, 39)]
    vL16, vZ, vFq, vFl, vTr, vTr2, vT, vL8, vOs = ['v%d' % r for r in range(9)]
    M0_, M1_ = ['s[44:45]', 's[46:47]', 's[48:49]', 's[50:51]'], ['s[54:55]', 's[56:57]', 's[58:59]', 's[60:61]']
    lane, tmp = 'v100', 'v101'
    a(f'''v_mov_b32 {lane}, v0
    v_lshlrev_b32 {vL16}, 4, {lane}
    v_lshlrev_b32 {vL8}, 3, {lane}
    v_mov_b32 {vZ}, 0
    s_mov_b32 {sSpin}, 0
    s_and_b32 {sU}, {sW}, 1
    s_lshr_b32 {t0}, {sW}, 1
    s_lshl_b32 {t1}, {sIdx}, 1
    s_add_u32 {t1}, {t1}, {t0}
    s_lshl_b32 {t0}, {sL}, 11
    s_add_u32 {t0}, {t0}, {t1}
    s_lshl_b32 {sKV}, {t0}, 14
    s_add_u32 {sKV}, {sKV}, {KV_OFF}
    s_lshl_b32 {sKVM}, {t0}, 13
    s_add_u32 {sQ}, {sKVM}, {Q_OFF}
    s_add_u32 {sKVM}, {sKVM}, {KVM_OFF}
    s_lshl_b32 {t0}, {sU}, 12
    s_add_u32 {sQ}, {sQ}, {t0}
    s_lshl_b32 {sO}, {sL}, 24
    s_add_u32 {sO}, {sO}, {O_OFF}
    s_lshl_b32 {t0}, {t1}, 13
    s_add_u32 {sO}, {sO}, {t0}
    s_lshl_b32 {t0}, {sU}, 8
    s_add_u32 {sO}, {sO}, {t0}
    s_lshl_b32 {t0}, {sL}, 5
    s_add_u32 {t0}, {t0}, {t1}
    s_lshl_b32 {t0}, {t0}, 7
    s_add_u32 {sFq}, {t0}, {KVF_OFF + 64}
    s_add_u32 {sFm}, {t0}, {MF_OFF}
    s_lshl_b32 {sFout}, {sL}, 2
    s_lshr_b32 {t0}, {t1}, 3
    s_add_u32 {sFout}, {sFout}, {t0}
    s_lshl_b32 {sFout}, {sFout}, 7
    s_and_b32 {t0}, {t1}, 7
    s_lshl_b32 {t0}, {t0}, 1
    s_add_u32 {t0}, {t0}, {sU}
    s_lshl_b32 {t0}, {t0}, 2
    s_add_u32 {sFout}, {sFout}, {t0}
    s_add_u32 {sFout}, {sFout}, {F_O}
    s_lshl_b32 {sLds}, {sW}, 12
    v_and_b32 {vFq}, 0x30, {vL16}
    s_mov_b32 s40, {C1}
    s_mov_b32 s41, {C1}''')
    publish(a, vT, vZ, 0, sFout, 'sc1')
    a('s_waitcnt vmcnt(0)\ns_barrier')
    if hook: hook('arrive')
    emit_lanefn(a, vTr, lane, lambda l: (16 * (l >> 5) + 4 * ((l >> 4) & 1) + ((l >> 2) & 3)) * 32 + (((l & 3) ^ ((l >> 4) & 1)) * 8), tmp)
    a(f'v_add_u32 {vTr}, {sLds}, {vTr}\nv_xor_b32 {vTr2}, 16, {vTr}')
    emit_lanefn(a, vOs, lane, lambda l: (l >> 5) * 1024 + ((l >> 4) & 1) * 512 + (l & 15) * 16, tmp)
    a(f'''v_and_b32 v102, 15, {lane}
    v_lshrrev_b32 v103, 4, {lane}
    v_lshlrev_b32 v103, 2, v103
    v_sub_u32 v102, v102, v103''')
    for i in range(4):
        a(f'''v_cmp_le_i32 vcc, {i}, v102
        s_nop 3
        s_cmp_eq_u32 {sU}, 0
        s_cselect_b64 {M0_[i]}, vcc, -1
        s_cselect_b64 {M1_[i]}, 0, vcc''')
    a('v_mov_b32 v9, 0xff800000')
    for r in (89, 90): a(f'v_mov_b32 v{r}, 0')
    if hook: hook('wait')
    def loop(local):
        STL = '' if local else 'sc1'
        X = lambda k: V(64 + 4 * k, 4)
        VM = lambda w: V(80 + 2 * w, 2)
        O = lambda E: 160 + 4 * E
        vFq2 = 'v14'; sNq, sKVl, sK1, sV0, sV1 = 's39', 's62', 's63', 's16', 's17'
        Lfin = lb('L_fin')
        def loads(b):
            L = lambda r, so, o: f'buffer_load_dwordx4 {A(b + r, 4)}, {vL16}, {WS}, {so} offen offset:{o} sc1'
            return ([L(4 * k, sQ, k * 1024) for k in range(4)] + [L(16 + 4 * k, sKV, k * 1024) for k in range(4)] +
                    [L(32 + 4 * k, sK1, k * 1024) for k in range(4)] + [L(48 + 4 * E, sV1 if E >= 4 else sV0, (E % 4) * 1024) for E in range(8)])
        def bases():
            a(f's_add_u32 {sK1}, {sKV}, 4096\ns_add_u32 {sV0}, {sKV}, 8192\ns_add_u32 {sV1}, {sKV}, 12288')
        a(f's_mov_b32 {sI}, 0\ns_mov_b32 {sNeed}, 1\ns_add_u32 {sKVl}, {sKV}, {(nseg - 1) * 32 * 16384}')
        bases()
        poll(a, vFq2, vFq, sFq, sNeed, lb('L_pq'), sleep=1)
        for x in loads(0): a(x)
        a('s_waitcnt vmcnt(0)')
        Ltop = lb('L_top')
        a(f'{Ltop}:')
        for half in range(2):
            b = 80 * half
            Q = lambda k: A(b + 4 * k, 4)
            K = lambda u, k: A(b + 16 + 16 * u + 4 * k, 4)
            Vx = lambda E: A(b + 48 + 4 * E, 4)
            pf = loads(80 - b)
            def P(n=1):
                for _ in range(n):
                    if pf: a(pf.pop(0))
            Lp = lb('L_pm')
            fl = f'buffer_load_dword {vFq2}, {vFq}, {WS}, {sFq} offen sc1\nbuffer_load_dword {vFl}, {vZ}, {WS}, {sFm} offen sc1'
            a(fl)
            for k in range(4):
                for u in range(2):
                    a(f"v_mfma_f32_16x16x32_bf16 {V(104+4*u,4)}, {K(u,k)}, {Q(k)}, {'0' if k == 0 else V(104+4*u,4)}")
            a(f'''s_add_u32 {sNq}, {sNeed}, 1
            s_min_u32 {sNq}, {sNq}, {nseg}
            s_cmp_lt_u32 {sKV}, {sKVl}
            s_cselect_b32 {t0}, {32 * 16384}, 0
            s_add_u32 {sKV}, {sKV}, {t0}
            s_lshr_b32 {t0}, {t0}, 1
            s_add_u32 {sQ}, {sQ}, {t0}''')
            bases()
            a(f'''s_mov_b32 m0, {sLds}
            s_add_u32 {t0}, {sKVM}, 4096
            s_branch {Lp}_c
            {Lp}:
            {fl}
            {Lp}_c:
            s_waitcnt vmcnt(0)
            v_cmp_gt_u32 vcc, {sNeed}, {vFl}
            v_cmp_gt_u32 s[18:19], {sNq}, {vFq2}
            s_add_u32 {sSpin}, {sSpin}, 0x1000
            s_nop 1
            s_or_b64 vcc, vcc, s[18:19]
            s_cbranch_scc0 {Lp}_ok
            s_cmp_lt_u32 {sSpin}, {SPIN}
            s_cbranch_scc1 {Lp}
            s_branch L_fail
            {Lp}_ok:''')
            for i in range(4): a(f'buffer_load_dwordx4 {vL16}, {WS}, {sKVM} offen offset:{i*1024} sc1 lds')
            for w in range(4): a(f'buffer_load_dwordx2 {VM(w)}, {vL8}, {WS}, {t0} offen offset:{w*512} sc1')
            P(npre)
            for u in range(2):
                for i in range(4): a(f'v_cndmask_b32 v{104+4*u+i}, v9, v{104+4*u+i}, {(M1_ if u else M0_)[i]}')
            a(f'''v_max3_f32 v10, v104, v105, v106
            v_max3_f32 v11, v107, v108, v109
            v_max3_f32 v10, v10, v110, v111
            v_max_f32 v10, v10, v11
            s_add_u32 {sNeed}, {sNeed}, 1
            s_add_u32 {sKVM}, {sKVM}, {32 * 8192}''')
            for k in range(4):
                a(f's_waitcnt vmcnt({7 - k + npre})')
                a(f'ds_read_b64_tr_b16 {V(64+4*k,2)}, {vTr} offset:{k*1024}')
                a(f'ds_read_b64_tr_b16 {V(66+4*k,2)}, {vTr2} offset:{k*1024+256}')
            P()
            for k in range(4):
                a(f's_waitcnt lgkmcnt({6-2*k})')
                a(f"v_mfma_f32_16x16x32_bf16 v[112:115], {X(k)}, {Q(k)}, {'0' if k == 0 else 'v[112:115]'}")
            P()
            a('''s_nop 6
            v_max3_f32 v11, v10, v112, v113
            v_max3_f32 v10, v10, v112, v113
            s_nop 0''')
            P()
            a('''v_permlane32_swap_b32 v10, v11
            v_max_f32 v12, v10, v11
            v_max_f32 v13, v10, v11
            s_nop 1
            v_permlane16_swap_b32 v12, v13
            v_max_f32 v10, v12, v13
            v_mul_f32 v10, s40, v10''')
            P()
            for r in range(104, 114, 2):
                a(f'v_pk_fma_f32 v[{r}:{r+1}], v[{r}:{r+1}], s[40:41], v[10:11] op_sel_hi:[1,1,0] neg_lo:[0,0,1] neg_hi:[0,0,1]')
            sm = '''v_exp_f32 v104, v104
            v_exp_f32 v105, v105
            v_exp_f32 v106, v106
            v_cvt_pk_bf16_f32 v92, v104, v105
            v_exp_f32 v107, v107
            v_exp_f32 v108, v108
            v_cvt_pk_bf16_f32 v93, v106, v107
            v_exp_f32 v109, v109
            v_pk_add_f32 v[12:13], v[104:105], v[106:107]
            v_exp_f32 v110, v110
            v_cvt_pk_bf16_f32 v94, v108, v109
            v_exp_f32 v111, v111
            v_pk_add_f32 v[12:13], v[12:13], v[108:109]
            v_exp_f32 v112, v112
            v_cvt_pk_bf16_f32 v95, v110, v111
            v_exp_f32 v113, v113
            v_pk_add_f32 v[12:13], v[12:13], v[110:111]
            v_cvt_pk_bf16_f32 v88, v112, v113
            v_cvt_pk_bf16_f32 v91, v112, v113
            v_pk_add_f32 v[12:13], v[12:13], v[112:113]'''.split('\n')
            for n, x in enumerate(sm):
                a(x)
                if n in (4, 11): P()
            a(f's_waitcnt vmcnt({20 - len(pf)})')
            side = ['v_add_f32 v10, v12, v13', 'v_add_f32 v11, v12, v13', 's_nop 1', 'v_permlane32_swap_b32 v10, v11',
                    'v_add_f32 v12, v10, v11', 'v_add_f32 v13, v10, v11', 's_nop 1', 'v_permlane16_swap_b32 v12, v13',
                    'v_add_f32 v10, v12, v13', 'v_rcp_f32 v10, v10', 's_nop 0']
            def fin(p):
                out = [f'v_mul_f32 v{O(2*p)+i}, v{O(2*p)+i}, v10' for i in range(8)]
                out += [f'v_cvt_pk_bf16_f32 v{116+4*(p&1)+i}, v{O(2*p)+2*i}, v{O(2*p)+2*i+1}' for i in range(4)]
                out += [f'buffer_store_dwordx4 {V(116+4*(p&1),4)}, {vOs}, {WS}, {t0 if p >= 2 else sO} offen offset:{(p&1)*2048} {STL}']
                return out
            a(f's_add_u32 {t0}, {sO}, 4096')
            n = 0
            for p in range(4):
                for ins in ([f'v_mfma_f32_16x16x32_bf16 {V(O(2*p+t),4)}, {Vx(2*p+t)}, v[92:95], 0' for t in range(2)] +
                            [f'v_mfma_f32_16x16x16_bf16 {V(O(2*p+t),4)}, {VM(p)}, {"v[90:91]" if t else "v[88:89]"}, {V(O(2*p+t),4)}' for t in range(2)]):
                    a(ins); n += 1
                    if n == 7: side += fin(0)
                    if n == 11: side += fin(1)
                    if n == 15: side += fin(2)
                    for _ in range(2):
                        if side: a(side.pop(0))
                    if n % 3 == 1: P()
            side += fin(3)
            for x in side: a(x)
            late = len(pf)
            P(late)
            a(f'''s_add_u32 {sI}, {sI}, 1
            s_add_u32 {sO}, {sO}, 262144
            s_waitcnt vmcnt({late})''')
            publish(a, vT, vZ, sI, sFout, STL, 0)
            if late: a('s_waitcnt vmcnt(1)')
            if half: a(f's_cmp_eq_u32 {sI}, {nseg}\ns_cbranch_scc0 {Ltop}')
    both(a, local, loop)
```

```python
import math, struct
from common import *

def f32bits(x): return struct.unpack('<I', struct.pack('<f', x))[0]
C1 = f32bits(128 ** -0.5 * math.log2(math.e))
L_K, L_M, L_T, L_O, L_S = 65536, 81920, 90112, 94208, 96256
MISC = 65536
QK_RES = [('q', 0), ('k', 0), ('q', 1), ('k', 1), ('q', 2), ('k', 2)]
QK_SLOT = [6, 7, 8, 9, 0, 1]

def alloc_frags():
    pool = [Reg('a', 8 * i) for i in range(32)] + [Reg('v', 128 + 8 * i) for i in range(16)]
    home = {}
    for m in 'qkv':
        for sg in range(8):
            for tau in range(2):
                home[(m, sg, tau)] = None if (m, sg) in QK_RES else pool.pop(0)
    for sp in range(2):
        for T in range(8):
            home[('o', sp, T)] = None if (sp == 1 and T >= 4) else pool.pop(0)
    assert not pool
    return home

def emit_chain(a, local=True, stamps=False, nseg=64, wait1=False, d1=6, d2=6, fine=False, nopub=False, noarm=False, timing=False, d3=-1, vg=(4, 4, 2, 2), perm=True, trace=False, rot=True, hook=None):
    ST = 'sc1'
    home = alloc_frags()
    sH, sS, sTag, sNTag = sIdx, 's28', 's29', 's30'
    sP0, sP1, sI0, sI1 = 's31', 's32', 's33', 's34'
    sMcur, sMnext, sMarm = 's35', 's36', 's37'
    sKV, sKVM, sKVF, sMF = 's38', 's39', 's40', 's41'
    t0, t1 = 's42', 's43'
    mO, mLo, mK = 's[44:45]', 's[46:47]', 's[48:49]'
    sC1 = 's50'; sG = 's53'
    sKVn, sKVv, sKVlast, sM0k = 's60', 's61', 's62', 's63'
    sGa, sWx, sPub, sNeed = 's54', 's55', 's3', 's38'
    sGb, sG2 = 's48', 's49'
    vL16, vLm, vLa, vLb, vLo, vTw, vTr, vOw, vPst, vMst, vIdx, vKr, vFlag, vVex = [f'v{i}' for i in range(14)]
    M = lambda sg: V(16 + 4 * sg, 4)
    lb = a.label
    def stamp(k, f=False):
        if fine and not f and k < 5: return
        if f and not fine: return
        if stamps:
            a(f'''s_memtime s[56:57]
            s_waitcnt lgkmcnt(0)
            s_sub_u32 s59, s56, s58
            s_add_u32 s{92+k}, s{92+k}, s59
            s_mov_b32 s58, s56''')
    TRK = '' if trace == 1 else 'real'
    TR = [92, 94, 96, 98, 100, 56, 58]
    def tr(k):
        if trace: a(f's_mem{TRK}time s[{TR[k]}:{TR[k]+1}]')
    lane = 'v40'; tmp = 'v41'
    a(f'v_mov_b32 {lane}, v0')
    a(f'v_lshlrev_b32 {vL16}, 4, {lane}')
    a(f'''
    s_mul_i32 {t0}, {sL}, 0x80000
    s_add_u32 {t0}, {t0}, {CH_OFF}
    s_lshl_b32 {t1}, {sW}, 16
    s_add_u32 {sP0}, {t0}, {t1}
    s_add_u32 {sP1}, {sP0}, 32768
    s_lshl_b32 {t1}, {sH}, 13
    s_add_u32 {sI0}, {t0}, {t1}
    s_add_u32 {sI1}, {sI0}, 4096
    s_add_u32 {sMcur}, {t0}, 0x40000
    s_add_u32 {sMnext}, {t0}, 0x42000
    s_add_u32 {sMarm}, {t0}, 0x44000
    s_lshl_b32 {t0}, {sL}, 11
    s_add_u32 {t0}, {t0}, {sH}
    s_lshl_b32 {sKV}, {t0}, 14
    s_add_u32 {sKV}, {sKV}, {KV_OFF}
    s_lshl_b32 {sKVM}, {t0}, 13
    s_add_u32 {sKVM}, {sKVM}, {KVM_OFF - L_T}
    s_lshl_b32 {t0}, {sL}, 5
    s_add_u32 {t0}, {t0}, {sH}
    s_lshl_b32 {sKVF}, {t0}, 7
    s_add_u32 {sKVF}, {sKVF}, {KVF_OFF}
    s_lshl_b32 {sMF}, {t0}, 7
    s_add_u32 {sMF}, {sMF}, {MF_OFF}
    s_mov_b32 s44, 0xcccccccc
    s_mov_b32 s45, 0xcccccccc
    s_mov_b32 s46, -1
    s_mov_b32 s47, 0
    s_mov_b32 s50, {C1}
    s_mov_b32 s51, {C1}
    s_mov_b32 {sSpin}, 0
    s_lshl_b32 {sG}, {sW}, 11
    s_add_u32 {sKV}, {sKV}, {sG}
    ''')
    emit_lanefn(a, vMst, lane, lambda l: ((l >> 3) & 1) * 1024 + (((l >> 1) & 3) * 16 + 2 * (l & 1) + ((l >> 4) & 1)) * 16, tmp, 5)
    a(f'''s_lshr_b32 {t0}, {sH}, 3
    s_lshl_b32 {t0}, {t0}, 11
    s_and_b32 {t1}, {sH}, 3
    s_lshl_b32 {t1}, {t1}, 6
    s_add_u32 {t0}, {t0}, {t1}
    s_and_b32 {t1}, {sH}, 4
    s_lshl_b32 {t1}, {t1}, 1
    s_add_u32 {t0}, {t0}, {t1}
    v_add_u32 {vMst}, {t0}, {vMst}''')
    L = lb('L_noarm')
    a(f'''s_cmp_lg_u32 {sW}, 0
    s_cbranch_scc1 {L}
    v_mov_b32 v16, -1
    v_mov_b32 v17, -1
    v_mov_b64 v[20:21], 0
    v_mov_b64 v[22:23], 0
    s_mov_b64 exec, {mLo}
    buffer_store_dwordx2 v[16:17], {vMst}, {WS}, {sMcur} offen {ST}
    buffer_store_dwordx2 v[16:17], {vMst}, {WS}, {sMnext} offen {ST}
    buffer_store_dwordx2 v[16:17], {vMst}, {WS}, {sMarm} offen {ST}
    s_mov_b64 exec, 1
    buffer_store_dword v20, v20, {WS}, {sMF} offen {ST}
    s_mov_b64 exec, -1''')
    for i in range(8):
        a(f'buffer_store_dwordx4 v[20:23], {vL16}, {WS}, {sI0 if i < 4 else sI1} offen offset:{(i%4)*1024} {ST}')
    a(f'{L}:')
    vD0, vD1, vR0, vR1, vRo, vA0, vA1 = 'v42', 'v43', 'v44', 'v45', 'v46', 'v47', 'v48'
    vDo = ['v50', 'v51', 'v52', 'v53']
    emit_lanefn(a, vD0, lane, lambda l: (l >> 4) * 8192 + (((l & 15) ^ (2 * ((l >> 4) & 1))) * 16), tmp)
    a(f'''s_and_b32 {t0}, {sW}, 1
    s_lshl_b32 {t0}, {t0}, 7
    v_xor_b32 {vD0}, {t0}, {vD0}
    v_xor_b32 {vD1}, 64, {vD0}''')
    def qk_rd(l):
        gb, pos, cp = l >> 4, (l >> 2) & 3, l & 3
        z, half, b = gb >> 1, pos >> 1, pos & 1
        rho = 2 * z + half + 16 * (gb & 1) + 4 * b
        p = cp >> 1
        return rho * 256 + ((p ^ (2 * half + 4 * b + 8 * (gb & 1))) * 16) + (cp & 1) * 8
    emit_lanefn(a, vR0, lane, qk_rd, tmp)
    a(f'''s_lshl_b32 {t0}, {sW}, 6
    v_xor_b32 {vR0}, {t0}, {vR0}
    v_xor_b32 {vR1}, 32, {vR0}''')
    a(f'''s_and_b32 {t0}, {sW}, 1
    s_lshl_b32 {t0}, {t0}, 5
    v_xor_b32 {vDo[0]}, {t0}, {vL16}
    v_xor_b32 {vDo[1]}, 16, {vDo[0]}''')
    def o_rd(l):
        gb, pos, cp = l >> 4, (l >> 2) & 3, l & 3
        z, half, b = gb >> 1, pos >> 1, pos & 1
        e = 16 * (gb & 1) + 8 * z + 4 * half + b
        return e * 1024 + ((4 * cp) ^ (b | (half << 1))) * 16
    emit_lanefn(a, vRo, lane, o_rd, tmp)
    a(f'''s_lshl_b32 {t0}, {sW}, 8
    v_add_u32 {vRo}, {t0}, {vRo}''')
    chunks = [('o', 0, i) for i in range(4)] + [('v', sg) for sg in range(8)]
    for sg in range(3, 8): chunks += [('q', sg), ('k', sg)]
    chunks += [('o', 1, i) for i in range(4)] + QK_RES
    assert len(chunks) == 32
    srd = {'q': 16, 'k': 20, 'v': 56, 'o': 60}
    build_srd(a, 16, 2, 4 << 20); build_srd(a, 20, 3, 4 << 20); build_srd(a, 56, 4, 4 << 20); build_srd(a, 60, 5, 4 << 20)
    sWq, sWo, sM0 = 's54', 's55', 's3'
    a(f'''s_lshl_b32 {sWq}, {sW}, 17
    s_lshl_b32 {t0}, {sH}, 8
    s_add_u32 {sWq}, {sWq}, {t0}
    s_lshl_b32 {sWo}, {sH}, 17
    s_lshl_b32 {t0}, {sW}, 12
    s_add_u32 {sWo}, {sWo}, {t0}
    s_lshl_b32 {sM0}, {sW}, 12''')
    def issue(c):
        ch = chunks[c]; slot = (c % 10) * 16384
        q = srd[ch[0]]
        for i in range(4):
            a(f's_add_u32 m0, {sM0}, {slot + i * 1024}')
            if ch[0] == 'o':
                a(f's_add_u32 {t0}, {sWo}, {(ch[1] * 64 + ch[2] * 16 + i) * 1024}')
                a(f'buffer_load_dwordx4 {vDo[i & 1]}, s[{q}:{q+3}], {t0} offen nt lds')
            else:
                a(f's_add_u32 {t0}, {sWq}, {(ch[1] * 64 + 4 * i) * 8192}')
                a(f'buffer_load_dwordx4 {vD1 if i & 1 else vD0}, s[{q}:{q+3}], {t0} offen nt lds')
    readiter = {c: (c if chunks[c][0] != 'o' else c + 3 - chunks[c][2]) for c in range(32)}
    issue_at = {}
    for c in range(10, 32): issue_at.setdefault(readiter[c - 10] + 1, []).append(c)
    for c in range(10): issue(c)
    issued = 10
    a(f'''s_lshl_b32 {t0}, {sW}, 12
    v_add_u32 {vLa}, {t0}, {vL16}
    v_add_u32 {vLb}, {6*16384}, {vLa}
    s_lshl_b32 {t0}, {sW}, 13
    s_add_u32 {t0}, {t0}, 32768
    v_add_u32 {vLo}, {t0}, {vL16}
    v_add_u32 {vLm}, {MISC}, {vL16}''')
    def res_addr(slot, tau, hf):
        return (vLa, slot * 16384 + tau * 2048 + hf * 1024) if slot < 2 else (vLb, (slot - 6) * 16384 + tau * 2048 + hf * 1024)
    pending_wb = []
    for n in range(33):
        if n < 32:
            a(f's_waitcnt vmcnt({4 * (issued - n - 1)}) lgkmcnt(0)')
        else:
            a('s_waitcnt lgkmcnt(0)')
        a('s_barrier')
        if n == 0: hook('arrive')
        for c in issue_at.get(n, []):
            issue(c); issued += 1
        for ins in pending_wb: a(ins)
        pending_wb = []
        if n == 32: break
        ch = chunks[n]; slot = n % 10
        if ch[0] == 'o':
            if ch[2] != 3: continue
            base = (slot - 3) * 16384
            for T in range(8):
                h_ = home[('o', ch[1], T)] or Reg('v', 56 + 8 * (T - 4))
                if T % 2 == 0:
                    a(f'v_xor_b32 {vA0}, {16 * (T >> 1)}, {vRo}')
                    if base: a(f'v_add_u32 {vA0}, {base}, {vA0}')
                for q in range(4):
                    a(f'ds_read_b64_tr_b16 {h_(2*q, 2)}, {vA0} offset:{(q >> 1) * 32768 + (q & 1) * 2048 + (T & 1) * 8}')
                if home[('o', ch[1], T)] is None:
                    for hf in range(2):
                        pending_wb.append(f'ds_write_b128 {vLo}, {h_(4*hf, 4)} offset:{(T - 4) * 2048 + hf * 1024}')
        else:
            a(f'v_add_u32 {vA0}, {slot * 16384}, {vR0}')
            a(f'v_add_u32 {vA1}, {slot * 16384}, {vR1}')
            for tau in range(2):
                h_ = home[(ch[0], ch[1], tau)] or Reg('v', 88 + 16 * (n & 1) + 8 * tau)
                for q in range(4):
                    a(f'ds_read_b64_tr_b16 {h_(2*q, 2)}, {vA1 if tau else vA0} offset:{(q >> 1) * 8192 + (q & 1) * 2048}')
                if home[(ch[0], ch[1], tau)] is None:
                    assert QK_SLOT[QK_RES.index(ch)] == slot
                    for hf in range(2):
                        r, o = res_addr(slot, tau, hf)
                        pending_wb.append(f'ds_write_b128 {r}, {h_(4*hf, 4)} offset:{o}')
    emit_lanefn(a, vTw, lane, lambda l: (l & 15) * 32 + (((l >> 4) ^ ((l >> 2) & 3)) * 8), tmp)
    a(f'''s_lshl_b32 {t0}, {sW}, 10
    s_add_u32 {t0}, {t0}, {L_T}
    v_add_u32 {vTw}, {t0}, {vTw}''')
    emit_lanefn(a, vTr, lane, lambda l: (16 * (l >> 5) + 4 * ((l >> 4) & 1) + ((l >> 2) & 3)) * 32 + (((l & 3) ^ ((l >> 4) & 1)) * 8), tmp)
    a(f'v_add_u32 {vTr}, {L_T}, {vTr}')
    emit_lanefn(a, vOw, lane, lambda l: ((l >> 5) * 16 + 4 * ((l >> 2) & 3) + 2 * ((l >> 4) & 1) + (l & 1)) * 16, tmp)
    a(f'''s_lshl_b32 {t0}, {sW}, 9
    s_add_u32 {t0}, {t0}, {L_O}
    v_add_u32 {vOw}, {t0}, {vOw}''')
    if perm:
        emit_lanefn(a, vPst, lane, lambda l: (l >> 4) * 8192 + (l >> 4) * 1024 + (l & 15) * 16, tmp)
        a(f'''s_and_b32 {t0}, {sH}, 15
        s_lshl_b32 {t0}, {t0}, 8
        v_xor_b32 {vPst}, {t0}, {vPst}
        s_and_b32 {t0}, {sH}, 16
        s_lshl_b32 {t0}, {t0}, 8
        s_add_u32 {sP0}, {sP0}, {t0}
        s_xor_b32 {t0}, {t0}, 4096
        s_add_u32 {sP1}, {sP1}, {t0}''')
    else:
        emit_lanefn(a, vPst, lane, lambda l: (l >> 4) * 8192 + (l & 15) * 16, tmp)
        a(f'''s_lshl_b32 {t0}, {sH}, 8
        s_add_u32 {sP0}, {sP0}, {t0}
        s_add_u32 {sP1}, {sP1}, {t0}''')
    emit_lanefn(a, vIdx, lane, lambda l: 0xEEEE if l & 2 else 0x4444, tmp)
    a(f'v_add_u32 {vKr}, {L_K}, {vL16}')
    a(f'''s_lshl_b32 {t0}, {sW}, 9
    s_add_u32 {t0}, {t0}, {4096 + L_T}
    v_lshlrev_b32 {vVex}, 3, {lane}
    v_add_u32 {vVex}, {t0}, {vVex}''')
    a(f'''v_and_b32 v14, 15, {lane}
    v_and_b32 v15, 1, v14
    v_lshlrev_b32 v15, 4, v15
    v_mov_b32 v54, 0x3f80
    v_lshlrev_b32 v15, v15, v54
    v_lshrrev_b32 v14, 1, v14''')
    for j in range(4):
        a(f'v_cmp_eq_u32 vcc, {j}, v14\ns_nop 1\nv_cndmask_b32 v{60+j}, 0, v15, vcc')
    a(f'ds_write_b128 {vLm}, v[60:63] offset:{L_S - MISC}')
    Lskip = lb('L_init_skip'); Lw = lb('L_team'); Lf0 = lb('L_f0')
    hook('wait')
    a(f's_mov_b32 {sSpin}, 0')
    build_srd(a, 16, 1, 8192)
    emit_lanefn(a, 'v48', lane, lambda l: ((l >> 4) & 1) * 1024 + (32 * ((l >> 2) & 3) + (l & 3)) * 2, tmp, 5)
    a(f'''s_cmp_lg_u32 {sW}, 0
    s_cbranch_scc1 {Lskip}
    s_and_b32 {t0}, {sH}, 3
    s_lshl_b32 {t0}, {t0}, 11
    s_lshr_b32 {t1}, {sH}, 3
    s_lshl_b32 {t1}, {t1}, 8
    s_add_u32 {t0}, {t0}, {t1}
    s_and_b32 {t1}, {sH}, 4
    s_lshl_b32 {t1}, {t1}, 3
    s_add_u32 {t0}, {t0}, {t1}
    buffer_load_ushort v50, v48, {SA}, {t0} offen
    buffer_load_ushort v51, v48, {SA}, {t0} offen offset:8
    buffer_load_ushort v52, v48, {SA}, {t0} offen offset:16
    buffer_load_ushort v53, v48, {SA}, {t0} offen offset:24
    s_waitcnt vmcnt(0)
    v_lshl_or_b32 v52, v53, 16, v52
    v_lshl_or_b32 v53, v51, 16, v50
    v_min_u32 v50, -2, v53
    v_mov_b32 v51, v52
    s_mov_b64 exec, {mLo}
    buffer_store_dwordx2 v[50:51], {vMst}, {WS}, {sMcur} offen {ST}
    s_mov_b64 exec, -1
    {Lskip}:
    s_mov_b32 {sS}, -1
    s_mov_b32 {t0}, {sMarm}
    s_mov_b32 {sMarm}, {sMnext}
    s_mov_b32 {sMnext}, {sMcur}
    s_mov_b32 {sMcur}, {t0}
    s_sub_u32 {sKVM}, {sKVM}, {32 * 8192}
    s_add_u32 {sKVlast}, {sKV}, {(nseg - 1) * 32 * 16384}
    s_add_u32 {sM0k}, {sG}, {L_K}
    v_and_b32 v15, 0x30, {vL16}
    {Lf0}:
    buffer_load_dword {vFlag}, v15, {WS}, {sKVF} offen sc1
    s_waitcnt vmcnt(0)
    v_cmp_eq_u32 vcc, 0, {vFlag}
    s_cbranch_vccz {Lf0}_ok
    s_add_u32 {sSpin}, {sSpin}, 0x1001
    s_cmp_lt_u32 {sSpin}, {SPIN}
    s_cbranch_scc1 {Lf0}
    s_branch L_fail
    {Lf0}_ok:
    s_mov_b32 m0, {sM0k}
    s_sub_u32 {sKV}, {sKV}, {32 * 16384}
    s_add_u32 {sKVn}, {sKV}, {32 * 16384}
    buffer_load_dwordx4 {vL16}, {WS}, {sKVn} offen sc1 lds
    buffer_load_dwordx4 {vL16}, {WS}, {sKVn} offen offset:1024 sc1 lds
    s_waitcnt vmcnt(0)
    ''')
    if timing: a('s_memrealtime s[16:17]\ns_memtime s[18:19]\ns_waitcnt lgkmcnt(0)')
    if stamps:
        for k in range(10): a(f's_mov_b32 s{92+k}, 0')
        a('s_memtime s[58:59]\ns_waitcnt lgkmcnt(0)')
    a(f'''s_and_b32 {t0}, {sH}, {1 if rot else 0}
    s_lshl_b32 {t0}, {t0}, 10
    s_add_u32 {sG}, {sG}, {t0}
    s_xor_b32 {sG2}, {sG}, 1024''')
    a(f's_cmp_eq_u32 {sW}, {9 if nopub else 3}\ns_cselect_b32 {sPub}, 0, 0x40000000\ns_mov_b32 {sWx}, 1')
    def loop(local):
        ST = '' if local else 'sc1'
        Lhop1, Lhop2, Ltick, Lgath, Lfin = lb('L_hop1'), lb('L_hop2'), lb('L_tick'), lb('L_gath'), lb('L_fin')
        a(f's_branch {Lhop1}')
        def smf(acc, afr, fr): a(f'v_smfmac_f32_16x16x64_bf16 {V(acc,4)}, {afr}, {fr(0,8)}, {vIdx}')
        Z = [Reg('v', 72 + 8 * i) for i in range(6)]
        def zl(i, tau):
            out = []
            for hf in range(2):
                r, o = res_addr(QK_SLOT[i], tau, hf)
                out.append(f'ds_read_b128 {Z[i](4*hf, 4)}, {r} offset:{o}')
            return out
        def fr(m, sg, tau):
            return home[(m, sg, tau)] or Z[QK_RES.index((m, sg))]
        vseq = [(sg, tau) for sg in range(8) for tau in range(2)]
        def vs(n):
            for _ in range(n):
                sg, tau = vseq.pop(0)
                smf(64 + 4 * tau, M(sg), home[('v', sg, tau)])
        X = lambda k: V(72 + 4 * k, 4)
        K = lambda u, k: V(88 + 8 * k + 4 * u, 4)
        a(f'.p2align 6\n{Ltick}:')
        tr(0)
        for sg in range(8): a(f'ds_read_b128 {M(sg)}, {vLm} offset:{L_M - MISC + sg * 1024}')
        zr = sum((zl(i, 1) for i in range(6)), [])
        post0 = ['v_add_f32 v52, v52, v54', 'v_add_f32 v53, v53, v55', 'v_add_f32 v48, v48, v50', 'v_add_f32 v49, v49, v51',
                 'v_cvt_pk_bf16_f32 v50, v52, v53', 'v_cvt_pk_bf16_f32 v51, v48, v49', f'ds_write_b64 {vTw}, v[50:51]',
                 f'buffer_store_dwordx2 v[50:51], {vTw}, {WS}, {sKVM} offen sc1']
        kr = [f'ds_read_b128 {K(u,k)}, {vKr} offset:{(u*4+k)*1024}' for k in range(4) for u in range(2)]
        vm = [f'buffer_load_dwordx4 v[120:123], {vL16}, {WS}, {sKVv} offen sc1',
              f'buffer_load_dwordx4 v[124:127], {vL16}, {WS}, {sKVv} offen offset:1024 sc1',
              f'buffer_load_dwordx4 {vL16}, {WS}, {sKVn} offen sc1 lds',
              f'buffer_load_dwordx4 {vL16}, {WS}, {sKVn} offen offset:1024 sc1 lds']
        mark(a, 'v126', 'v127', sS, 0) if False else None
        a(vm[0])
        a(f'buffer_store_dword v14, v15, {WS}, {sMF} offen sc1')
        fill = {1: zr[0], 2: zr[1], 3: vm[1], 4: zr[2], 5: zr[3], 6: zr[4], 7: zr[5], 8: vm[2], 9: zr[6], 10: zr[7], 11: zr[8],
                12: zr[9], 13: vm[3], 14: zr[10], 15: zr[11]}
        pre = {0: 's_waitcnt lgkmcnt(7)', 2: 's_waitcnt lgkmcnt(7)', 4: 's_waitcnt lgkmcnt(7)', 6: 's_waitcnt lgkmcnt(4)',
               16: 's_waitcnt lgkmcnt(4)', 20: 's_waitcnt lgkmcnt(0)'}
        rest = post0[:5] + kr[:1] + post0[5:6] + kr[1:2] + post0[6:7] + kr[2:3] + post0[7:8] + kr[3:]
        for n in range(17, 32): fill[n] = rest.pop(0)
        seq = [(m, sg, tau) for tau in range(2) for sg in range(8) for m in 'qk']
        for n, (m, sg, tau) in enumerate(seq):
            if n in pre: a(pre[n])
            smf(48 + 8 * tau + (4 if m == 'k' else 0), M(sg), fr(m, sg, tau))
            if n in fill: a(fill[n])
        stamp(0)
        vs(1); a(rest.pop(0)); vs(1)
        assert not rest
        a(f'''v_add_f32 v56, v56, v58
        v_add_f32 v57, v57, v59
        v_add_f32 v60, v60, v62
        v_add_f32 v61, v61, v63
        v_cvt_pk_bf16_f32 v59, v56, v57
        v_cvt_pk_bf16_f32 v58, v60, v61
        ds_write_b64 {vTw}, v[58:59] offset:512''')
        vs(1)
        a(f'buffer_store_dwordx2 v[58:59], {vTw}, {WS}, {sKVM} offen offset:512 sc1')
        vs(1)
        a(f'v_xor_b32 v14, 16, {vTr}')
        vs(vg[0] - 2)
        a('s_waitcnt lgkmcnt(0)\ns_barrier')
        stamp(1)
        for k in range(4):
            a(f'ds_read_b64_tr_b16 {V(72+4*k,2)}, {vTr} offset:{k*1024}')
            a(f'ds_read_b64_tr_b16 {V(74+4*k,2)}, v14 offset:{k*1024+256}')
            if k < vg[1]: vs(1)
        a(f'v_and_b32 v15, 0x30, {vL16}')
        for k in range(4):
            a(f's_waitcnt lgkmcnt({6 - 2*k})')
            c = lambda r: '0' if k == 0 else V(r, 4)
            a(f'v_mfma_f32_16x16x32_bf16 v[48:51], {K(0,k)}, {X(k)}, {c(48)}')
            a(f'v_mfma_f32_16x16x32_bf16 v[52:55], {K(1,k)}, {X(k)}, {c(52)}')
            if k == 0: a(f'buffer_load_dword {vFlag}, v15, {WS}, {sKVF} offen sc1')
            if k == 1: a(f'v_xor_b32 {vKr}, 8192, {vKr}')
            a(f'v_mfma_f32_16x16x32_bf16 v[56:59], {X(k)}, {X(k)}, {c(56)}')
        vs(2)
        stamp(2)
        a(f'''v_max3_f32 v14, v48, v49, v50
        v_max3_f32 v15, v51, v52, v53
        v_max3_f32 v14, v14, v54, v55
        v_max3_f32 v15, v15, v56, v57
        v_max_f32 v58, v14, v15
        v_max_f32 v59, v14, v15''')
        def gap(n):
            vs(n)
            if n < 2: a(f's_nop {1 - n}')
        gap(vg[2])
        a('''v_permlane32_swap_b32 v58, v59
        v_max_f32 v14, v58, v59
        v_max_f32 v15, v58, v59''')
        gap(vg[3])
        assert not vseq
        a(f'''v_permlane16_swap_b32 v14, v15
        v_max_f32 v14, v14, v15
        v_mul_f32 v14, {sC1}, v14''')
        for n, r in enumerate(range(48, 58, 2)):
            a(f'v_pk_fma_f32 v[{r}:{r+1}], v[{r}:{r+1}], s[50:51], v[14:15] op_sel_hi:[1,1,0] neg_lo:[0,0,1] neg_hi:[0,0,1]')
        a(f'''v_exp_f32 v56, v56
        v_exp_f32 v57, v57
        v_exp_f32 v48, v48
        v_exp_f32 v49, v49
        v_exp_f32 v50, v50
        v_cvt_pk_bf16_f32 v60, v48, v49
        v_exp_f32 v51, v51
        v_pk_add_f32 v[58:59], v[56:57], v[48:49]
        v_exp_f32 v52, v52
        v_cvt_pk_bf16_f32 v61, v50, v51
        v_exp_f32 v53, v53
        v_pk_add_f32 v[58:59], v[58:59], v[50:51]
        v_exp_f32 v54, v54
        v_cvt_pk_bf16_f32 v62, v52, v53
        v_exp_f32 v55, v55
        v_pk_add_f32 v[58:59], v[58:59], v[52:53]
        v_cvt_pk_bf16_f32 v63, v54, v55
        v_add_f32 v64, v64, v66
        s_waitcnt vmcnt(5)
        v_mfma_f32_16x16x32_bf16 v[104:107], v[120:123], v[60:63], 0
        v_add_f32 v65, v65, v67
        v_add_f32 v68, v68, v70
        v_mfma_f32_16x16x32_bf16 v[108:111], v[124:127], v[60:63], 0
        v_add_f32 v69, v69, v71
        v_cvt_pk_bf16_f32 v64, v64, v65
        v_cvt_pk_bf16_f32 v112, v56, v57
        v_cvt_pk_bf16_f32 v65, v68, v69
        v_mov_b32 v113, 0
        v_mov_b32 v114, 0
        v_cvt_pk_bf16_f32 v115, v56, v57
        v_mfma_f32_16x16x16_bf16 v[104:107], v[64:65], v[112:113], v[104:107]
        v_add_f32 v58, v58, v54
        v_add_f32 v59, v59, v55
        v_mfma_f32_16x16x16_bf16 v[108:111], v[64:65], v[114:115], v[108:111]
        v_add_f32 v14, v58, v59
        v_add_f32 v15, v58, v59
        buffer_store_dwordx2 v[64:65], {vVex}, {WS}, {sKVM} offen sc1
        ds_read_b128 v[16:19], {vLo}
        v_permlane32_swap_b32 v14, v15
        v_add_f32 v48, v14, v15
        v_add_f32 v49, v14, v15
        ds_read_b128 v[20:23], {vLo} offset:1024
        ds_read_b128 v[24:27], {vLo} offset:2048
        v_permlane16_swap_b32 v48, v49
        v_add_f32 v14, v48, v49
        v_rcp_f32 v14, v14
        ds_read_b128 v[28:31], {vLo} offset:3072''')
        for r in range(104, 112, 2):
            a(f'v_pk_mul_f32 v[{r}:{r+1}], v[{r}:{r+1}], v[14:15] op_sel_hi:[1,0]')
        a(f's_mov_b64 exec, {mO}')
        for i in range(4): a(f'v_cvt_pk_bf16_f32 v{112+i}, v{104+2*i}, v{105+2*i}')
        a(f'''ds_write_b128 {vOw}, v[112:115]
        s_mov_b64 exec, -1''')
        stamp(3)
        tr(6)
        a(f'''s_cmp_eq_u32 {sS}, {nseg-1}
        s_cbranch_scc1 {Lfin}''')
        for r in range(72, 96, 2): a(f'v_mov_b64 v[{r}:{r+1}], 0')
        a('s_waitcnt lgkmcnt(0)\ns_barrier')
        a(f'ds_read_b128 v[120:123], {vLm} offset:{L_O - MISC}')
        a(f'ds_read_b128 v[124:127], {vLm} offset:{L_O - MISC + 1024}')
        for r in range(96, 104, 2): a(f'v_mov_b64 v[{r}:{r+1}], 0')
        stamp(4)
        ofr = lambda sp, T: home[('o', sp, T)] or Reg('v', 16 + 8 * (T - 4))
        y = lambda T, r: f'v{72 + 4*T + r}'
        ad = lambda T, r: f'v_add_f32 {y(T,r)}, {y(T,r)}, {y(T,r+2)}'
        cv = lambda d, T, r: f'v_cvt_pk_bf16_f32 v{d}, {y(T,r)}, {y(T+1,r)}'
        order = [(sp, 2 * p + t) for p in range(4) for sp in range(2) for t in range(2)]
        rd = [f'ds_read_b128 {V(16+4*i,4)}, {vLo} offset:{i*1024}' for i in range(4, 8)]
        post = {0: [rd[0]], 1: [rd[1], 's_waitcnt lgkmcnt(2)'], 2: [rd[2]], 3: [rd[3]],
                4: [ad(0, 0)], 5: [ad(0, 1)], 6: [ad(1, 0)], 7: [ad(1, 1)], 8: [cv(104, 0, 0), ad(2, 0)], 9: [cv(106, 0, 1), 's_waitcnt lgkmcnt(0)'],
                10: [ad(3, 0), ad(2, 1)], 11: [ad(3, 1), cv(105, 2, 0)], 12: [cv(107, 2, 1), f'v_and_or_b32 v104, v104, -2, {sTag}'],
                13: [f'buffer_store_dwordx4 v[104:107], {vPst}, {WS}, {sP0} offen {ST}', ad(4, 0)], 14: [ad(5, 0)], 15: [ad(4, 1), ad(5, 1)]}
        a('s_waitcnt lgkmcnt(1)')
        for n, (sp, T) in enumerate(order):
            smf(72 + 4 * T, 'v[124:127]' if sp else 'v[120:123]', ofr(sp, T))
            for x in post[n]: a(x)
        a(f'''{cv(108, 4, 0)}
        {cv(110, 4, 1)}
        v_and_or_b32 v108, v108, -2, {sTag}
        {ad(6, 0)}
        {ad(6, 1)}
        s_nop 0
        {ad(7, 0)}
        {ad(7, 1)}
        {cv(109, 6, 0)}
        {cv(111, 6, 1)}
        buffer_store_dwordx4 v[108:111], {vPst}, {WS}, {sP1} offen {ST}''')
        stamp(5)
        tr(1)
        Lp1, Lfl, Lno = lb('L_poll1'), lb('L_flag'), lb('L_nored')
        a(f'{Lhop1}:')
        a(f'ds_read_b128 v[124:127], {vLm} offset:{L_S - MISC}')
        for r in range(48, 72, 2): a(f'v_mov_b64 v[{r}:{r+1}], 0')
        for i in range(6):
            for x in zl(i, 0): a(x)
        a(f'''s_add_u32 {sS}, {sS}, 1
        s_add_u32 {sKVM}, {sKVM}, {32 * 8192}
        s_add_u32 {sKVv}, {sKVn}, 8192
        s_add_u32 {sKVn}, {sKVn}, {32 * 16384}
        s_min_u32 {sKVn}, {sKVn}, {sKVlast}
        s_xor_b32 {sM0k}, {sM0k}, 8192
        s_mov_b32 m0, {sM0k}
        s_add_u32 {sGa}, {sMnext}, {sG}
        s_add_u32 {sGb}, {sMnext}, {sG2}
        s_add_u32 {sNeed}, {sS}, 2
        s_min_u32 {sNeed}, {sNeed}, {nseg}
        s_cmp_lg_u32 {sWx}, 0
        s_cbranch_scc1 {Lno}''')
        if wait1: a('s_waitcnt vmcnt(0)')
        for _ in range(d1): a('s_nop 7')
        stamp(9)
        tr(2)
        a(f'{Lp1}:')
        for i in range(8):
            a(f'buffer_load_dwordx4 {V(16+4*i,4)}, {vL16}, {WS}, {sI0 if i < 4 else sI1} offen offset:{(i%4)*1024} sc1')
        a('s_waitcnt lgkmcnt(12)')
        tt = ((0xF0 ^ 0xAA) & (0xCC ^ 0xAA)) & 0xFF
        t2 = (0xF0 & (0xCC ^ 0xAA)) & 0xFF
        for i in range(8):
            a(f's_waitcnt vmcnt({7-i})')
            a(f"v_mfma_f32_16x16x32_bf16 v[120:123], v[124:127], {V(16+4*i,4)}, {'0' if i == 0 else 'v[120:123]'}")
            if i == 1: a(f'v_bitop3_b32 v14, v16, v20, {sNTag} bitop3:{tt}')
            if i > 1: a(f'v_bitop3_b32 v14, v14, v{16+4*i}, {sNTag} bitop3:{t2}')
        a(f'''v_and_b32 v14, 1, v14
        v_cmp_eq_u32 vcc, 0, v14
        v_mov_b32 v124, -1
        v_mov_b32 v125, -1
        s_mov_b64 exec, {mLo}
        s_nop 1
        v_cvt_pk_bf16_f32 v14, v120, v121
        v_cvt_pk_bf16_f32 v15, v122, v123
        v_min_u32 v14, -2, v14
        s_cbranch_vccz {Lp1}_ok
        s_mov_b64 exec, -1
        ds_read_b128 v[124:127], {vLm} offset:{L_S - MISC}
        s_add_u32 {sSpin}, {sSpin}, 0x1001
        s_cmp_lt_u32 {sSpin}, {SPIN}
        s_waitcnt lgkmcnt(0)
        s_cbranch_scc1 {Lp1}
        s_branch L_fail
        {Lno}:
        s_waitcnt vmcnt(0)
        s_branch {Lhop2}
        {Lp1}_ok:''')
        stamp(2, True)
        tr(3)
        a(f'''buffer_store_dwordx2 v[14:15], {vMst}, {WS}, {sMnext} offen {ST}
    ''')
        a(f'buffer_store_dwordx2 v[124:125], {vMst}, {WS}, {sMarm} offen {ST}')
        a(f'''s_mov_b64 exec, -1
        {Lhop2}:
        s_barrier''')
        stamp(6)
        tr(4)
        for _ in range(d2): a('s_nop 7')
        stamp(0, True)
        a(f'{Lgath}:')
        a(f'buffer_load_dwordx4 v[16:19], {vL16}, {WS}, {sGa} offen sc1')
        a(f'buffer_load_dwordx4 v[20:23], {vL16}, {WS}, {sGb} offen sc1')
        a(f'''v_add_u32 v14, {sG}, {vLm}
        v_add_u32 v24, {sG2}, {vLm}
        s_waitcnt vmcnt(1)
        ds_write_b128 v14, v[16:19] offset:{L_M - MISC}
        v_max_u32 v15, v16, v18
        s_waitcnt vmcnt(0)
        ds_write_b128 v24, v[20:23] offset:{L_M - MISC}
        v_max3_u32 v15, v15, v20, v22
        v_cmp_eq_u32 vcc, -1, v15
        s_add_u32 {sSpin}, {sSpin}, 0x1000
        s_cmp_lt_u32 {sSpin}, 0x7fff0000
        s_cbranch_vccz {Lgath}_ok
        s_cbranch_scc1 {Lgath}
        s_branch L_fail
        {Lgath}_ok:''')
        stamp(1, True)
        tr(5)
        a(f'''{Lfl}:
        v_cmp_gt_u32 vcc, {sNeed}, {vFlag}
        s_cbranch_vccz {Lfl}_ok
        v_and_b32 v15, 0x30, {vL16}
        buffer_load_dword {vFlag}, v15, {WS}, {sKVF} offen sc1
        s_add_u32 {sSpin}, {sSpin}, 0x1001
        s_cmp_lt_u32 {sSpin}, {SPIN}
        s_waitcnt vmcnt(0)
        s_cbranch_scc1 {Lfl}
        s_branch L_fail
        {Lfl}_ok:
        s_mov_b32 {t0}, {sMcur}
        s_mov_b32 {sMcur}, {sMnext}
        s_mov_b32 {sMnext}, {sMarm}
        s_mov_b32 {sMarm}, {t0}
        s_and_b32 {sNTag}, {sS}, 1
        s_xor_b32 {sTag}, {sNTag}, 1
        s_mov_b32 {sWx}, {sW}''')
        if trace:
            a('s_waitcnt lgkmcnt(0)')
            for k in range(7): a(f'v_writelane_b32 v14, s{TR[k]}, {k}')
            a(f'''v_writelane_b32 v14, {sSpin}, 7
            s_lshl_b32 {t0}, {sL}, 5
            s_add_u32 {t0}, {t0}, {sH}
            s_lshl_b32 {t0}, {t0}, 2
            s_add_u32 {t0}, {t0}, {sW}
            s_lshl_b32 {t0}, {t0}, 6
            s_add_u32 {t0}, {t0}, {sS}
            s_lshl_b32 {t0}, {t0}, 5
            s_add_u32 {t0}, {t0}, {DBG_OFF + 0x100000}
            v_lshrrev_b32 v15, 2, {vL16}
            s_mov_b64 exec, 0xff
            buffer_store_dword v14, v15, {WS}, {t0} offen
            s_mov_b64 exec, -1''')
        if TRACE[0]:
            a('v_mov_b32 v15, 0'); mark(a, 'v14', 'v15', sS, 0)
        a(f'''v_mov_b32 v14, {sS}
        v_mov_b32 v15, {sPub}''')
        stamp(7)
        a(f'''s_waitcnt lgkmcnt(0)
        s_barrier''')
        stamp(8)
        a(f'''s_branch {Ltick}
        {Lfin}:
        s_waitcnt vmcnt(0)
        s_barrier
        v_mov_b32 v15, 0
        v_mov_b32 v14, {nseg}
        s_mov_b64 exec, 1
        buffer_store_dword v14, v15, {WS}, {sMF} offen sc1
        s_mov_b64 exec, -1''')
    both(a, local, loop)
```

```python
from asmlib import *
from lanefn import emit_lanefn
F_XN, F_X1, F_PW, F_H, F_PD = 0x0000, 0x0200, 0x0400, 0x0600, 0x0800
F_O   = 0x0A00
KVF_OFF = 0x2000
MF_OFF  = 0x8000
CH_OFF  = 0x100000
DBG_OFF = 0x200000
KV_OFF  = 0x0800000
Q_OFF   = 0x4800000
KVM_OFF = 0x6800000
O_OFF   = 0x8800000
PW_OFF  = 0xA800000
PD_OFF  = 0xC800000
H_OFF   = 0xD800000
XN_OFF  = 0xE800000
XR_OFF  = 0xEC00000
X1_OFF  = 0xF000000
X1N_OFF = 0xF400000
SPIN = 0x7fff0000
WS = 's[8:11]'; DBG = 's[12:15]'; SA = 's[16:19]'; SB = 's[20:23]'
P = lambda i: 64 + 2 * i
sW, sXCC, sRANK = 's24', 's25', 's26'

def build_srd(a, q, ptr, nbytes):
    a(f'''s_mov_b32 s{q}, s{P(ptr)}
    s_mov_b32 s{q+1}, s{P(ptr)+1}
    s_mov_b32 s{q+2}, {nbytes}
    s_mov_b32 s{q+3}, 0x00020000''')

def prologue(a, nwg=256, fake=False):
    a(f'''
    s_cmp_ge_u32 s2, {nwg}
    s_cbranch_scc1 L_end
    s_load_dwordx16 s[64:79], s[0:1], 0
    s_load_dwordx8 s[80:87], s[0:1], 64
    s_load_dwordx4 s[88:91], s[0:1], 96
    s_getreg_b32 {sXCC}, hwreg(HW_REG_XCC_ID, 0, 4)
    v_lshrrev_b32 v1, 6, v0
    v_and_b32 v0, 63, v0
    s_nop 0
    v_readfirstlane_b32 {sW}, v1
    s_waitcnt lgkmcnt(0)
    ''')
    build_srd(a, 8, 13, 0x10000000)
    build_srd(a, 12, 12, 256)
    if fake:
        a(f's_lshr_b32 {sXCC}, s2, 5\ns_cmp_lt_u32 s2, 40\ns_cselect_b32 {sXCC}, 5, {sXCC}')
    a(f'''
    s_and_b32 {sXCC}, {sXCC}, 7
    s_cmp_lg_u32 {sW}, 0
    s_cbranch_scc1 L_norank
    v_mov_b32 v3, 1
    s_lshl_b32 s27, {sXCC}, 2
    v_mov_b32 v4, s27
    v_mov_b32 v5, 0
    s_mov_b64 exec, 1
    buffer_atomic_add v3, v4, {DBG}, 0 offen sc0
    s_waitcnt vmcnt(0)
    ds_write_b32 v5, v3
    s_waitcnt lgkmcnt(0)
    s_mov_b64 exec, -1
    L_norank:
    s_barrier
    v_mov_b32 v5, 0
    ds_read_b32 v3, v5
    s_waitcnt lgkmcnt(0)
    v_readfirstlane_b32 {sRANK}, v3
    s_barrier
    ''')

def rng(kind, b, n):
    return f'{kind}[{b}:{b+n-1}]' if n > 1 else f'{kind}{b}'
def V(b, n=1): return rng('v', b, n)
def A(b, n=1): return rng('a', b, n)
class Reg:
    def __init__(s, kind, b): s.kind, s.b = kind, b
    def __call__(s, o=0, n=1): return rng(s.kind, s.b + o, n)

sL, sIdx, sSpin = 's27', 's26', 's52'
def poll(a, vdst, vaddr, soff, sneed, lab, sleep=0, first_issued=False):
    if first_issued: a(f's_branch {lab}_c')
    a(f'{lab}:')
    if sleep: a(f's_sleep {sleep}')
    a(f"""buffer_load_dword {vdst}, {vaddr}, {WS}, {soff} offen sc1
    s_waitcnt vmcnt(0)
    {lab}_c:
    v_cmp_gt_u32 vcc, {sneed}, {vdst}
    s_add_u32 {sSpin}, {sSpin}, 0x1000
    s_cmp_lt_u32 {sSpin}, {SPIN}
    s_cbranch_vccz {lab}_ok
    s_cbranch_scc1 {lab}
    s_branch L_fail
    {lab}_ok:""")
def publish(a, vtmp, vzero, sval, soff, ST, kind=None):
    a(f"""v_mov_b32 {vtmp}, {sval}
    s_mov_b64 exec, 1
    buffer_store_dword {vtmp}, {vzero}, {WS}, {soff} offen {ST}
    s_mov_b64 exec, -1""")
    if kind is not None: mark(a, vtmp, vzero, sval, kind)

TRACE = [False]
sSlot, sMode = 's4', 's5'
def mark(a, vtmp, vzero, sval, kind):
    if not TRACE[0]: return
    a(f"""s_memrealtime s[100:101]
    s_lshl_b32 s98, {sSlot}, 2
    s_add_u32 s98, s98, {sW}
    s_lshl_b32 s98, s98, 1
    s_add_u32 s98, s98, {kind}
    s_lshl_b32 s98, s98, 7
    s_add_u32 s98, s98, {sval}
    s_lshl_b32 s98, s98, 2
    s_add_u32 s98, s98, {DBG_OFF}
    s_waitcnt lgkmcnt(0)
    v_mov_b32 {vtmp}, s100
    s_mov_b64 exec, 1
    buffer_store_dword {vtmp}, {vzero}, {WS}, s98 offen
    s_mov_b64 exec, -1""")
def both(a, local, fn):
    if local is not None: return fn(local)
    L = a.label('L_nonlocal')
    a(f's_cmp_lg_u32 {sMode}, 0\ns_cbranch_scc1 {L}')
    fn(True)
    a(f's_branch L_done\n{L}:')
    fn(False)
```

```python
import math, struct
from common import *
def f32bits(x): return struct.unpack('<I', struct.pack('<f', x))[0]

def kmap_x(kap, hi, jq): return 16 * kap + 8 * jq + 4 * hi
def kmap_o(kap, hi, jq): return 128 * (kap >> 3) + 32 * ((kap >> 1) & 3) + 16 * jq + 8 * (kap & 1) + 4 * hi

CFG = {
    'qkv': dict(nk=32, chunks=[8, 8, 8, 8], up=8, kmap=kmap_x),
    'w':   dict(nk=64, chunks=[8, 8, 16, 16, 16], up=8, kmap=kmap_o),
    'u':   dict(nk=32, chunks=[8, 8, 8, 8], up=8, kmap=kmap_x),
    'd':   dict(nk=56, chunks=[8, 8, 8, 16, 16], up=6, kmap=kmap_x),
}

def emit_gemm(a, kind, local=True, nseg=64, ring=6, hook=None, nopref=False, trace=None, nt=56):
    cfg = CFG[kind]; nk, kmap = cfg['nk'], cfg['kmap']
    lb = a.label
    t0, t1 = 's42', 's43'
    sI, sIn, sOut, sOut2, sOut3, sFin, sFout, sBuf, sNeed, sPref, sWofs, sM0 = ['s%d' % r for r in range(28, 40)]
    vL16, vF, vZ, vFl, vRd, vS0, vS1, vT = ['v%d' % r for r in range(8)]
    lane, tmp = 'v100', 'v101'
    a(f'v_mov_b32 {lane}, v0\nv_lshlrev_b32 {vL16}, 4, {lane}\nv_mov_b32 {vZ}, 0\ns_mov_b32 {sSpin}, 0')
    passes = {'qkv': ['k', 'v', 'q'], 'w': ['o'], 'u': ['a', 'b'], 'd': ['d']}[kind]
    pool = [Reg('a', 4 * i) for i in range(64)] + [Reg('v', 128 + 4 * i) for i in range(32)]
    home = {(p, k): pool.pop(0) for p in passes for k in range(nk)}
    if kind == 'qkv':
        mats = [(3, 8192, 4 << 20), (4, 8192, 4 << 20), (2, 8192, 4 << 20)]
        a(f'''s_lshl_b32 {sWofs}, {sIdx}, 8
        s_lshl_b32 {t0}, {sL}, 21
        s_add_u32 {sIn}, {t0}, {XN_OFF}
        s_lshl_b32 {t0}, {sL}, 11
        s_add_u32 {t0}, {t0}, {sIdx}
        s_lshl_b32 {sOut}, {t0}, 14
        s_add_u32 {sOut}, {sOut}, {KV_OFF}
        s_lshl_b32 {sOut3}, {t0}, 13
        s_add_u32 {sOut3}, {sOut3}, {Q_OFF}
        s_lshl_b32 {t0}, {sW}, 11
        s_add_u32 {sOut2}, {sOut}, {t0}
        s_add_u32 {sOut2}, {sOut2}, 8192
        s_lshl_b32 {t0}, {sW}, 10
        s_add_u32 {sOut}, {sOut}, {t0}
        s_add_u32 {sOut3}, {sOut3}, {t0}
        s_lshl_b32 {sFin}, {sL}, 8
        s_add_u32 {sFin}, {sFin}, {F_XN}
        s_lshl_b32 {t0}, {sL}, 5
        s_add_u32 {t0}, {t0}, {sIdx}
        s_lshl_b32 {t0}, {t0}, 7
        s_lshl_b32 {t1}, {sW}, 4
        s_add_u32 {t0}, {t0}, {t1}
        s_add_u32 {sFout}, {t0}, {KVF_OFF}
        v_and_b32 {vF}, 15, {lane}
        v_lshlrev_b32 {vF}, 2, {vF}''')
        emit_lanefn(a, vS0, lane, lambda l: ((l >> 4) & 1) * 4096 + (l >> 5) * 256 + (l & 15) * 16, tmp)
        emit_lanefn(a, vS1, lane, lambda l: ((l >> 4) & 1) * 1024 + (l >> 5) * 256 + (l & 15) * 16, tmp)
        instride, outstride, STO = 32768, None, 'x'
        nchunk = [(m, c) for m in range(3) for c in range(8)]
    elif kind in ('w', 'd'):
        rows = nk * 16
        mats = [(5 if kind == 'w' else 10, 1024, (4 << 20) if kind == 'w' else 1792 * 1024)]
        inoff, instride, kgin = (O_OFF, 262144, 65536) if kind == 'w' else (H_OFF, 131072, 57344)
        outoff, outstride = (PW_OFF, 262144) if kind == 'w' else (PD_OFF, 131072)
        a(f'''s_lshr_b32 {t0}, {sIdx}, 2
        s_and_b32 {t1}, {sIdx}, 3
        s_mul_i32 {sWofs}, {t0}, {rows * 1024}
        s_lshl_b32 {sOut}, {t1}, 8
        s_add_u32 {sWofs}, {sWofs}, {sOut}
        s_mul_i32 {sIn}, {sL}, {64 * instride}
        s_mul_i32 {sOut}, {t0}, {kgin}
        s_add_u32 {sIn}, {sIn}, {sOut}
        s_add_u32 {sIn}, {sIn}, {inoff}
        s_mul_i32 {sOut}, {sL}, {64 * outstride}
        s_add_u32 {sOut}, {sOut}, {outoff}
        s_lshl_b32 {sFin}, {t0}, 16
        s_add_u32 {sOut}, {sOut}, {sFin}
        s_lshl_b32 {sFin}, {t1}, 14
        s_add_u32 {sOut}, {sOut}, {sFin}
        s_lshl_b32 {sFin}, {sW}, 12
        s_add_u32 {sOut}, {sOut}, {sFin}
        s_lshl_b32 {sFout}, {sIdx}, 2
        s_add_u32 {sFout}, {sFout}, {sW}
        s_lshl_b32 {sFout}, {sFout}, 2
        s_lshl_b32 {t1}, {sL}, 8
        s_add_u32 {sFout}, {sFout}, {t1}
        s_add_u32 {sFout}, {sFout}, {F_PW if kind == 'w' else F_PD}''')
        if kind == 'w':
            a(f'''s_lshl_b32 {sFin}, {sL}, 2
            s_add_u32 {sFin}, {sFin}, {t0}
            s_lshl_b32 {sFin}, {sFin}, 7
            s_add_u32 {sFin}, {sFin}, {F_O}
            v_and_b32 {vF}, 15, {lane}
            v_lshlrev_b32 {vF}, 2, {vF}''')
            STO = 'x'
        else:
            a(f'''s_mul_i32 {sFin}, {t0}, 112
            s_add_u32 {sFin}, {sFin}, {t1}
            s_add_u32 {sFin}, {sFin}, {F_H}
            v_min_u32 {vF}, 27, {lane}
            v_lshlrev_b32 {vF}, 2, {vF}''')
            STO = 'l'
        nchunk = [(0, c) for c in range(rows // 64)]
    else:
        mats = [(8, 3584, 512 * 3584), (9, 3584, 512 * 3584)]
        instride, outstride, STO = 32768, 131072, 'l'
        a(f'''s_lshl_b32 {sWofs}, {sIdx}, 8
        s_lshl_b32 {t0}, {sL}, 21
        s_add_u32 {sIn}, {t0}, {X1N_OFF}
        s_lshl_b32 {sOut}, {sL}, 23
        s_add_u32 {sOut}, {sOut}, {H_OFF}
        s_lshl_b32 {t0}, {sIdx}, 13
        s_add_u32 {sOut}, {sOut}, {t0}
        s_lshl_b32 {t0}, {sW}, 11
        s_add_u32 {sOut}, {sOut}, {t0}
        s_lshl_b32 {t1}, {sL}, 8
        s_add_u32 {sFin}, {t1}, {F_X1}
        s_lshl_b32 {sFout}, {sIdx}, 2
        s_add_u32 {sFout}, {sFout}, {sW}
        s_lshl_b32 {sFout}, {sFout}, 2
        s_add_u32 {sFout}, {sFout}, {t1}
        s_add_u32 {sFout}, {sFout}, {F_H}
        v_and_b32 {vF}, 15, {lane}
        v_lshlrev_b32 {vF}, 2, {vF}''')
        nchunk = [(m, c) for c in range(8) for m in range(2)]
    publish(a, vT, vZ, 0, sFout, 'sc1')
    if kind == 'qkv':
        a(f's_add_u32 {t0}, {sFout}, 64'); publish(a, vT, vZ, 0, t0, 'sc1')
    vD = ['v102', 'v103']; vR = 'v104'; vA = ['v105', 'v106']
    srdq = [16, 20, 56]
    for m, (ptr, stride, nb) in enumerate(mats): build_srd(a, srdq[m], ptr, nb)
    stride = mats[0][1]
    emit_lanefn(a, vD[0], lane, lambda l: ((l & 15) ^ (4 * (l >> 4))) * 16, tmp)
    a(f'''v_lshrrev_b32 {tmp}, 4, {lane}
    v_mul_u32_u24 {tmp}, {stride}, {tmp}
    v_xor_b32 {vD[1]}, 32, {vD[0]}
    v_add_u32 {vD[0]}, {tmp}, {vD[0]}
    v_add_u32 {vD[1]}, {tmp}, {vD[1]}
    s_mul_i32 {t0}, {sW}, {16 * stride}
    s_add_u32 {sWofs}, {sWofs}, {t0}
    s_lshl_b32 {sM0}, {sW}, 12''')
    if kind == 'u':
        f = lambda l: (4 * (l >> 5) + ((l >> 2) & 3)) * 256 + ((l >> 4) & 1) * 16384 + ((((l & 3) >> 1) ^ (4 * ((l >> 2) & 3)) ^ (2 * ((l >> 4) & 1))) * 16) + (l & 1) * 8
    else:
        f = lambda l: (4 * (l >> 5) + ((l >> 2) & 3)) * 256 + (((2 * ((l >> 4) & 1) + ((l & 3) >> 1)) ^ (4 * ((l >> 2) & 3))) * 16) + (l & 1) * 8
    emit_lanefn(a, vR, lane, f, tmp)
    a(f's_lshl_b32 {t0}, {sW}, 6\nv_xor_b32 {vR}, {t0}, {vR}')
    NC = len(nchunk)
    def issue(n):
        m, c = nchunk[n]; q = srdq[m]
        for i in range(4):
            a(f's_add_u32 m0, {sM0}, {(n % 10) * 16384 + i * 1024}')
            a(f's_add_u32 {t0}, {sWofs}, {(c * 64 + 4 * i) * stride}')
            a(f"buffer_load_dwordx4 {vD[1] if (kind == 'u' and m) else vD[0]}, s[{q}:{q+3}], {t0} offen nt lds")
    readiter = {n: (n | 1 if kind == 'u' else n) for n in range(NC)}
    issue_at = {}
    for n in range(10, NC): issue_at.setdefault(readiter[n - 10] + 1, []).append(n)
    for n in range(10): issue(n)
    issued = 10
    for n in range(NC):
        a(f's_waitcnt vmcnt({4 * (issued - n - 1)}) lgkmcnt(0)\ns_barrier')
        if n == 0 and hook: hook('arrive')
        for c in issue_at.get(n, []):
            issue(c); issued += 1
        m, c = nchunk[n]
        if kind == 'u' and m == 0: continue
        base = ((n - 1) % 10 if kind == 'u' else n % 10) * 16384
        a(f'v_add_u32 {vA[0]}, {base}, {vR}')
        if kind == 'u': a(f'v_xor_b32 {vA[1]}, 32, {vA[0]}')
        for kap in range(nk):
            if kmap(kap, 0, 0) // 64 != c: continue
            for pi, p in enumerate(passes):
                if kind == 'qkv' and pi != m: continue
                for jq in range(2):
                    a(f'ds_read_b64_tr_b16 {home[(p, kap)](2*jq, 2)}, {vA[pi if kind == "u" else 0]} offset:{(kmap(kap, 0, jq) % 64) * 256}')
    a('s_waitcnt lgkmcnt(0)\ns_barrier')
    if hook: hook('wait')
    SCOPE = STO
    def loop(local):
        STO = '' if (local and SCOPE == 'l') else 'sc1'
        bufsz = nk * 1024
        Litem, Ldma, Lfin = lb('L_item'), lb('L_dma'), lb('L_fin')
        sB2, sB4, sI2, sI4 = 's44', 's45', 's46', 's47'
        a(f'''s_mov_b32 {sI}, 0
        s_mov_b32 {sNeed}, 1
        s_mov_b32 {sBuf}, 0
        s_lshl_b32 {sB2}, {sW}, 11
        s_lshl_b32 {sB4}, {sW}, 12
        s_add_u32 {sI2}, {sIn}, {sB2}
        s_add_u32 {sI4}, {sIn}, {sB4}
        v_mov_b32 {vRd}, {vL16}''')
        def dma_ops():
            out = []; k0 = 0
            for ci, per in enumerate(cfg['chunks']):
                n = per // 4
                su = [f's_add_u32 m0, {sB2 if n == 2 else sB4}, {k0 * 1024}', f's_add_u32 {t0}, {sI2 if n == 2 else sI4}, {k0 * 1024}']
                for i in range(n):
                    out.append((su if i == 0 else [], f'buffer_load_dwordx4 {vL16}, {WS}, {t0} offen offset:{i*1024} sc1 lds', ci))
                k0 += per
            return out
        def advance():
            a(f'''s_add_u32 {sNeed}, {sNeed}, 1
            s_add_u32 {sI2}, {sI2}, {instride}
            s_add_u32 {sI4}, {sI4}, {instride}
            s_sub_u32 {sB2}, {sB2}, {sBuf}
            s_sub_u32 {sB4}, {sB4}, {sBuf}
            s_sub_u32 {sBuf}, {bufsz}, {sBuf}
            s_add_u32 {sB2}, {sB2}, {sBuf}
            s_add_u32 {sB4}, {sB4}, {sBuf}''')
        steps = [(pi, k) for pi in range(len(passes)) for k in range(nk)]
        LA = ring - 1
        RG = lambda n: V(48 + 4 * (n % ring), 4)
        ACC = lambda pi: 16 + 16 * (pi & 1)
        cstart = {sum(cfg['chunks'][:c]): c for c in range(len(cfg['chunks']))}
        def epi(pi):
            r = lambda i: f'v{ACC(pi) + i}'
            p = passes[pi]; out = []
            if p in 'kq':
                for pc in range(2):
                    out += [f'v_cvt_pk_bf16_f32 v{72+4*pc+i}, {r(8*pc+2*i)}, {r(8*pc+2*i+1)}' for i in range(4)]
                    out += [f"buffer_store_dwordx4 {V(72+4*pc,4)}, {vS0}, {WS}, {sOut if p == 'k' else sOut3} offen offset:{pc*512} sc1"]
            elif p == 'v':
                for pc in range(2):
                    out += [f'v_cvt_pk_bf16_f32 v{72+4*pc+i}, {r(4*pc+8*(i>>1)+2*(i&1))}, {r(4*pc+8*(i>>1)+2*(i&1)+1)}' for i in range(4)]
                    out += [f'buffer_store_dwordx4 {V(72+4*pc,4)}, {vS1}, {WS}, {sOut2} offen offset:{pc*512} sc1']
            elif p in 'od':
                out += [f'buffer_store_dwordx4 {V(ACC(pi)+4*q,4)}, {vL16}, {WS}, {sOut} offen offset:{q*1024} {STO}' for q in range(4)]
            else:
                T = lambda i: f'v{80+i}'
                for i in range(8): out += [f'v_mul_f32 {T(i)}, s40, {r(i)}']
                for i in range(8): out += [f'v_exp_f32 {T(i)}, {T(i)}']
                for i in range(8): out += [f'v_add_f32 {T(i)}, 1.0, {T(i)}']
                for i in range(8): out += [f'v_rcp_f32 {T(i)}, {T(i)}']
                for i in range(8): out += [f'v_mul_f32 {r(i)}, {r(i)}, {r(8+i)}']
                for i in range(8): out += [f'v_mul_f32 {T(i)}, {T(i)}, {r(i)}']
                out += [f'v_cvt_pk_bf16_f32 v{72+4*pi+i}, {T(2*i)}, {T(2*i+1)}' for i in range(4)]
                out += [f'buffer_store_dwordx4 {V(72+4*pi,4)}, {vL16}, {WS}, {sOut} offen offset:{pi*1024} {STO}']
            return out
        if kind == 'u': a(f's_mov_b32 s40, {f32bits(-math.log2(math.e))}')
        st = dict(side=[], dq=[], issued=0, need=[])
        def put_dma():
            su, ins, ci = st['dq'].pop(0)
            for x in su: a(x)
            a(ins); st['issued'] += 1
        def rd(n, waits):
            if n >= len(steps): return
            if n in cstart:
                if waits: a(f"s_waitcnt vmcnt({st['issued'] - st['need'][cstart[n]]})")
                a('s_barrier')
            a(f'ds_read_b128 {RG(n)}, {vRd} offset:{steps[n][1] * 1024}')
        TRS = [92, 94, 96, 98, 100, 50, 56, 58]
        def tr(i):
            if trace: a(f's_memtime s[{TRS[i]}:{TRS[i]+1}]')
        def tr_flush():
            if not trace: return
            a('s_waitcnt lgkmcnt(0)')
            for i in range(8): a(f'v_writelane_b32 v90, s{TRS[i]}, {i}')
            a(f'''s_lshl_b32 {t1}, s2, 2
            s_add_u32 {t1}, {t1}, {sW}
            s_lshl_b32 {t1}, {t1}, 6
            s_add_u32 {t1}, {t1}, {sI}
            s_lshl_b32 {t1}, {t1}, 5
            s_add_u32 {t1}, {t1}, {DBG_OFF + 0x100000 - 32}
            v_lshrrev_b32 v91, 2, {vL16}
            s_mov_b64 exec, 0xff
            buffer_store_dword v90, v91, {WS}, {t1} offen
            s_mov_b64 exec, -1''')
        def run(n0, n1, waits):
            for n in range(n0, n1):
                if trace and n in trace: tr(1 + trace.index(n))
                pi, k = steps[n]
                rd(n + LA, waits)
                a(f's_waitcnt lgkmcnt({min(LA, len(steps) - 1 - n)})')
                c = '0' if k == 0 else V(ACC(pi), 16)
                wf = home[(passes[pi], k)](0, 4)
                if passes[pi] == 'v': a(f'v_mfma_f32_32x32x16_bf16 {V(ACC(pi),16)}, {RG(n)}, {wf}, {c}')
                else: a(f'v_mfma_f32_32x32x16_bf16 {V(ACC(pi),16)}, {wf}, {RG(n)}, {c}')
                if kind == 'qkv' and pi == 1 and k == 0:
                    a(f'buffer_load_dword {vFl}, {vF}, {WS}, {sFin} offen sc1')
                if kind == 'qkv' and pi == 0 and k == 29: a(f'v_mov_b32 {vT}, {sI}\ns_add_u32 {t1}, {sFout}, 64')
                if kind == 'qkv' and pi == 0 and k == 30:
                    a(f's_waitcnt vmcnt(0)\nbuffer_store_dword {vT}, {vZ}, {WS}, {t1} offen sc1')
                if k == 1 and pi > 0: st['side'] = epi(pi - 1)
                for _ in range(3 if kind == 'u' else 2):
                    if st['side']: a(st['side'].pop(0))
                if st['dq'] and n % 2 == 0: put_dma()
        def start_dma(upfront):
            ops = dma_ops()
            st.update(dq=ops, issued=0, need=[sum(1 for o in ops if o[2] <= c) for c in range(len(cfg['chunks']))])
            for _ in range(upfront): put_dma()
        def tail_end():
            tr(5)
            a(f'''s_add_u32 {sI}, {sI}, 1
            v_add_u32 {vRd}, {sBuf}, {vL16}
            s_nop 9''')
            for x in epi(len(passes) - 1): a(x)
        a(f'{Litem}:')
        poll(a, vFl, vF, sFin, sNeed, lb('L_poll'))
        a(f'{Ldma}:')
        start_dma(cfg['up'])
        tr(7)
        for n in range(LA): rd(n, True)
        if kind != 'qkv':
            run(0, len(steps), True)
            assert not st['side'] and not st['dq']
            advance()
            tail_end()
            a(f'''buffer_load_dword {vFl}, {vF}, {WS}, {sFin} offen sc1
            s_add_u32 {sOut}, {sOut}, {outstride}
            s_waitcnt vmcnt(0)''')
            tr(6)
            publish(a, vT, vZ, sI, sFout, STO, 0)
            tr_flush(); tr(0)
            a(f'''s_cmp_eq_u32 {sI}, {nseg}
            s_cbranch_scc1 {Lfin}
            v_cmp_gt_u32 vcc, {sNeed}, {vFl}
            s_cbranch_vccz {Ldma}
            s_branch {Litem}''')
        else:
            Lmid, Lt0 = lb('L_mid'), lb('L_tail0')
            NH, NT = 24, nt
            def kv_pub():
                a(f'''s_add_u32 {sOut}, {sOut}, {32 * 16384}
                s_add_u32 {sOut2}, {sOut2}, {32 * 16384}
                s_add_u32 {sOut3}, {sOut3}, {32 * 8192}
                s_waitcnt vmcnt(2)''')
                tr(6)
                publish(a, vT, vZ, sI, sFout, 'sc1', 0)
                tr_flush(); tr(0)
            run(0, NH, True)
            a(f'{Lmid}:')
            run(NH, NT - 2, False)
            advance()
            run(NT - 2, NT - 1, False)
            a(f's_waitcnt vmcnt({4 if NT > 70 else 2})\nv_cmp_gt_u32 vcc, {sNeed}, {vFl}')
            run(NT - 1, NT, False)
            a(f"{'s_branch' if nopref else 's_cbranch_vccnz'} {Lt0}")
            start_dma(0)
            run(NT, len(steps), False)
            assert not st['side'] and not st['dq']
            tail_end(); kv_pub()
            for n in range(LA): rd(n, False)
            run(0, NH, False)
            a(f's_branch {Lmid}\n{Lt0}:')
            run(NT, len(steps), False)
            tail_end(); kv_pub()
            a(f'''s_cmp_eq_u32 {sI}, {nseg}
            s_cbranch_scc0 {Litem}
            s_waitcnt vmcnt(0)
            s_add_u32 {t0}, {sFout}, 64''')
            publish(a, vT, vZ, sI, t0, 'sc1')
        a(f'{Lfin}:')
    both(a, True if SCOPE == 'x' else local, loop)
```

```python
def emit_lanefn(a, dst, lane, f, tmp, nbits=6):
    base = f(0)
    masks = [f(1 << b) ^ base for b in range(nbits)]
    for l in range(1 << nbits):
        v = base
        for b in range(nbits):
            if l >> b & 1: v ^= masks[b]
        assert v == f(l), ('not xor-linear', l, v, f(l))
    a(f'v_mov_b32 {dst}, {base}')
    for b in range(nbits):
        if masks[b] == 0: continue
        a(f'v_bfe_i32 {tmp}, {lane}, {b}, 1')
        a(f'v_and_b32 {tmp}, {masks[b]}, {tmp}')
        a(f'v_xor_b32 {dst}, {dst}, {tmp}')
```

```python
import struct
from common import *
def f32bits(x): return struct.unpack('<I', struct.pack('<f', x))[0]

def emit_r(a, kind, local=True, nseg=64, hook=None):
    lb = a.label
    t0, t1 = 's42', 's43'
    sI, sNeed, sP, sRes, sRaw, sNorm, sFin, sFout, sRow, sLd = ['s%d' % r for r in range(28, 38)]
    sPk = ['s44', 's45', 's46', 's47']
    vP, vX, vRow, vZ, vF, vFl, vT, vSw, vSr = ['v%d' % r for r in range(1, 10)]
    lane, tmp = 'v100', 'v101'
    npart = {'r0': 0, 'r1': 4, 'r2': 2}[kind]
    a(f'v_mov_b32 {lane}, v0\nv_mov_b32 {vZ}, 0\ns_mov_b32 {sSpin}, 0')
    emit_lanefn(a, vP, lane, lambda l: (l >> 4) * 4096 + ((l >> 3) & 1) * 512 + (l & 7) * 16, tmp)
    emit_lanefn(a, vX, lane, lambda l: (l >> 4) * 2048 + ((l >> 3) & 1) * 512 + (l & 7) * 16, tmp)
    emit_lanefn(a, vRow, lane, lambda l: (l >> 4) * 64 + ((l >> 3) & 1) * 8 + (l & 7) * 1024, tmp)
    a(f'''v_and_b32 {vSr}, 7, {lane}
    v_lshlrev_b32 {vSr}, 5, {vSr}
    s_lshl_b32 {t0}, {sW}, 3
    v_add_u32 {vSw}, {t0}, {vSr}
    s_lshl_b32 {t0}, {sW}, 13
    s_lshl_b32 {t1}, {sIdx}, 7
    s_add_u32 {sRes}, {t0}, {t1}
    s_add_u32 {sP}, {sRes}, {t0}
    s_lshl_b32 {sRow}, {sIdx}, 13
    s_lshl_b32 {t0}, {sW}, 8
    s_add_u32 {sRow}, {sRow}, {t0}
    s_lshl_b32 {sFout}, {sIdx}, 2
    s_add_u32 {sFout}, {sFout}, {sW}
    s_lshl_b32 {sFout}, {sFout}, 2''')
    if kind == 'r0':
        a(f'''s_add_u32 {sRaw}, {sRes}, {XR_OFF}
        s_add_u32 {sNorm}, {sRes}, {XN_OFF}
        s_add_u32 {sFout}, {sFout}, {F_XN}''')
        build_srd(a, 16, 0, 2 << 20)
        pstride, SCOPE = 0, 'x'
    elif kind == 'r1':
        a(f'''s_lshl_b32 {t1}, {sL}, 21
        s_add_u32 {sRes}, {sRes}, {t1}
        s_add_u32 {sRaw}, {sRes}, {X1_OFF}
        s_add_u32 {sNorm}, {sRes}, {X1N_OFF}
        s_add_u32 {sRes}, {sRes}, {XR_OFF}
        s_lshl_b32 {t1}, {sL}, 24
        s_add_u32 {sP}, {sP}, {t1}
        s_add_u32 {sP}, {sP}, {PW_OFF}
        s_lshl_b32 {t1}, {sL}, 8
        s_add_u32 {sFin}, {t1}, {F_PW}
        s_add_u32 {sFout}, {sFout}, {t1}
        s_add_u32 {sFout}, {sFout}, {F_X1}
        v_lshlrev_b32 {vF}, 2, {lane}''')
        pstride, SCOPE = 262144, 'l'
    else:
        a(f'''s_add_u32 {sRaw}, {sRes}, {XR_OFF + (2 << 20)}
        s_add_u32 {sNorm}, {sRes}, {XN_OFF + (2 << 20)}
        s_lshl_b32 {t1}, {sL}, 21
        s_add_u32 {sRes}, {sRes}, {t1}
        s_add_u32 {sRes}, {sRes}, {X1_OFF}
        s_lshl_b32 {t1}, {sL}, 23
        s_add_u32 {sP}, {sP}, {t1}
        s_add_u32 {sP}, {sP}, {PD_OFF}
        s_lshl_b32 {t1}, {sL}, 8
        s_add_u32 {sFin}, {t1}, {F_PD}
        s_add_u32 {sFout}, {sFout}, {t1}
        s_add_u32 {sFout}, {sFout}, {F_XN + 256}
        v_and_b32 {vF}, 31, {lane}
        v_lshlrev_b32 {vF}, 2, {vF}''')
        build_srd(a, 16, 11, 2 << 20)
        pstride, SCOPE = 131072, 'x'
    Lnz = lb('L_nz')
    if kind == 'r2': a(f's_cmp_lg_u32 {sL}, 0\ns_cbranch_scc1 {Lnz}')
    publish(a, vT, vZ, 0, sFout, 'sc1')
    a(f'{Lnz}:')
    a('s_waitcnt vmcnt(0)\ns_barrier')
    if hook: hook('arrive')
    if hook: hook('wait' if kind != 'r0' else 'nowait')
    a(f'''s_mov_b32 s40, {f32bits(1 / 128)}
    s_mov_b32 s41, {f32bits(1e-5)}
    s_mov_b32 s38, 0xffff0000
    s_mov_b32 s39, {f32bits(128.0)}
    s_mov_b32 {sI}, 0
    s_mov_b32 {sNeed}, 1''')
    def loop(local):
        STO = '' if (local and SCOPE == 'l') else 'sc1'
        Litem, Lld, Lfin, Lout = lb('L_item'), lb('L_ld'), lb('L_fin'), lb('L_out')
        X = lambda i: f'v{16 + i}'
        R = lambda i: f'v{80 + i}'
        a(f'{Litem}:')
        if npart: poll(a, vFl, vF, sFin, sNeed, lb('L_poll'))
        a(f'{Lld}:')
        if kind == 'r0':
            for q in range(4): a(f'buffer_load_dwordx2 {V(80+2*q,2)}, {vRow}, {SA}, {sRow} offen offset:{q*16}')
            a('s_waitcnt vmcnt(0)')
        else:
            for kg in range(npart):
                a(f's_add_u32 {sPk[kg]}, {sP}, {kg * 65536}')
                for q in range(4): a(f'buffer_load_dwordx4 {V(16+16*kg+4*q,4)}, {vP}, {WS}, {sPk[kg]} offen offset:{q*1024} sc1')
            for p in range(2): a(f'buffer_load_dwordx4 {V(80+4*p,4)}, {vX}, {WS}, {sRes} offen offset:{p*1024} sc1')
            for kg in range(1, npart):
                a(f's_waitcnt vmcnt({2 + 4 * (npart - 1 - kg)})')
                for i in range(0, 16, 2): a(f'v_pk_add_f32 v[{16+i}:{17+i}], v[{16+i}:{17+i}], v[{16+16*kg+i}:{17+16*kg+i}]')
            a('s_waitcnt vmcnt(0)')
            for i in range(8):
                a(f'v_lshlrev_b32 v{32+2*i}, 16, {R(i)}\nv_and_b32 v{33+2*i}, s38, {R(i)}')
            for i in range(0, 16, 2): a(f'v_pk_add_f32 v[{16+i}:{17+i}], v[{16+i}:{17+i}], v[{32+i}:{33+i}]')
            for i in range(8): a(f'v_cvt_pk_bf16_f32 {R(i)}, {X(2*i)}, {X(2*i+1)}')
        if kind == 'r2': a(f's_cmp_lg_u32 {sL}, 0\ns_cbranch_scc1 {Lout}')
        for p in range(2): a(f'buffer_store_dwordx4 {V(80+4*p,4)}, {vX}, {WS}, {sRaw} offen offset:{p*1024} {STO}')
        for i in range(8):
            a(f'v_lshlrev_b32 {X(2*i)}, 16, {R(i)}\nv_and_b32 {X(2*i+1)}, s38, {R(i)}')
        def tree(src, dst):
            for i in range(0, 8, 2): a(f'v_pk_add_f32 v[{dst+i}:{dst+i+1}], v[{src+i}:{src+i+1}], v[{src+8+i}:{src+9+i}]')
            for i in range(0, 4, 2): a(f'v_pk_add_f32 v[{dst+i}:{dst+i+1}], v[{dst+i}:{dst+i+1}], v[{dst+4+i}:{dst+5+i}]')
            a(f'''v_pk_add_f32 v[{dst}:{dst+1}], v[{dst}:{dst+1}], v[{dst+2}:{dst+3}]
            v_add_f32 v10, v{dst}, v{dst+1}
            s_nop 1
            v_add_f32_dpp v10, v10, v10 row_ror:8 row_mask:0xf bank_mask:0xf
            v_mov_b32 v11, v10
            s_nop 1
            v_permlane16_swap_b32 v10, v11
            v_add_f32 v12, v10, v11
            v_add_f32 v13, v10, v11
            s_nop 1
            v_permlane32_swap_b32 v12, v13
            v_add_f32 v10, v12, v13''')
        tree(16, 48)
        a('v_mul_f32 v14, s40, v10')
        for i in range(0, 16, 2):
            a(f'v_pk_add_f32 v[{32+i}:{33+i}], v[{16+i}:{17+i}], v[14:15] op_sel_hi:[1,0] neg_lo:[0,1] neg_hi:[0,1]')
        for i in range(0, 16, 2): a(f'v_pk_mul_f32 v[{32+i}:{33+i}], v[{32+i}:{33+i}], v[{32+i}:{33+i}]')
        tree(32, 48)
        a(f'''v_mov_b32 v15, v10
        s_mov_b64 exec, 0xff
        ds_write_b64 {vSw}, v[14:15]
        s_mov_b64 exec, -1
        s_waitcnt lgkmcnt(0)
        s_barrier
        ds_read_b128 v[48:51], {vSr}
        ds_read_b128 v[52:55], {vSr} offset:16
        v_xor_b32 {vSw}, 256, {vSw}
        v_xor_b32 {vSr}, 256, {vSr}
        s_waitcnt lgkmcnt(0)
        v_add_f32 v10, v48, v50
        v_add_f32 v11, v52, v54
        v_add_f32 v12, v49, v51
        v_add_f32 v13, v53, v55
        v_add_f32 v10, v10, v11
        v_add_f32 v12, v12, v13
        v_mul_f32 v10, 0.25, v10
        v_sub_f32 v48, v48, v10
        v_sub_f32 v50, v50, v10
        v_sub_f32 v52, v52, v10
        v_sub_f32 v54, v54, v10
        v_mul_f32 v48, v48, v48
        v_fmac_f32 v48, v50, v50
        v_fmac_f32 v48, v52, v52
        v_fmac_f32 v48, v54, v54
        v_fmac_f32 v12, s39, v48
        v_mov_b32 v13, s41
        v_fmac_f32 v13, {f32bits(1/512)}, v12
        v_rsq_f32 v12, v13
        s_nop 0
        v_mul_f32 v10, v10, v12'''.replace('0.25,', f'{f32bits(0.25)},'))
        for i in range(0, 16, 2):
            a(f'v_pk_fma_f32 v[{16+i}:{17+i}], v[{16+i}:{17+i}], v[12:13], v[10:11] op_sel_hi:[1,0,0] neg_lo:[0,0,1] neg_hi:[0,0,1]')
        for i in range(8): a(f'v_cvt_pk_bf16_f32 v{88+i}, {X(2*i)}, {X(2*i+1)}')
        for p in range(2): a(f'buffer_store_dwordx4 {V(88+4*p,4)}, {vX}, {WS}, {sNorm} offen offset:{p*1024} {STO}')
        def adv():
            a(f'''s_add_u32 {sI}, {sI}, 1
            s_add_u32 {sNeed}, {sNeed}, 1
            s_add_u32 {sP}, {sP}, {pstride}
            s_add_u32 {sRes}, {sRes}, 32768
            s_add_u32 {sRaw}, {sRaw}, 32768
            s_add_u32 {sNorm}, {sNorm}, 32768
            s_add_u32 {sRow}, {sRow}, 32768''')
        if npart: a(f'buffer_load_dword {vFl}, {vF}, {WS}, {sFin} offen sc1')
        adv()
        a('s_waitcnt vmcnt(0)')
        publish(a, vT, vZ, sI, sFout, STO, 0)
        a(f's_cmp_eq_u32 {sI}, {nseg}\ns_cbranch_scc1 {Lfin}')
        if npart: a(f'v_cmp_gt_u32 vcc, {sNeed}, {vFl}\ns_cbranch_vccz {Lld}')
        a(f's_branch {Litem}')
        if kind == 'r2':
            a(f'{Lout}:')
            for q in range(4): a(f'buffer_store_dwordx2 {V(80+2*q,2)}, {vRow}, {SA}, {sRow} offen offset:{q*16}')
            adv()
            mark(a, vT, vZ, sI, 0)
            a(f's_cmp_eq_u32 {sI}, {nseg}\ns_cbranch_scc0 {Litem}')
        a(f'{Lfin}:')
    both(a, True if SCOPE == 'x' else local, loop)
```

```python
import sys, json
import common
from common import *
import chain, gemm, att, rrole

HEADER = open('cdna_kernels/' + NAME + '.s.ref').read().split('; Override launch')[0]

def gen(trace=False, local=None, fakexcc=False, chain_kw={}, qkv_kw={}, att_kw={}):
    common.TRACE[0] = trace
    a = Asm()
    prologue(a, fake=fakexcc)
    a(f'''s_mov_b32 {sSpin}, 0
    s_cmp_lt_u32 {sRANK}, 32
    s_cbranch_scc1 L_slot
    v_min_u32 v1, 7, v0
    v_lshlrev_b32 v1, 2, v1
    L_ovf:
    s_sleep 4
    buffer_load_dword v2, v1, {DBG}, 0 offen sc1
    s_waitcnt vmcnt(0)
    s_mov_b32 s42, 0''')
    for i in range(8): a(f'v_readlane_b32 s43, v2, {i}\ns_nop 3\ns_add_u32 s42, s42, s43')
    a(f'''s_add_u32 {sSpin}, {sSpin}, 0x1000
    s_cmp_ge_u32 {sSpin}, {SPIN}
    s_cbranch_scc1 L_fail
    s_cmp_lt_u32 s42, 256
    s_cbranch_scc1 L_ovf
    s_sub_u32 s42, {sRANK}, 32''')
    for i in range(8):
        a(f'''v_readlane_b32 s43, v2, {i}
        s_nop 3
        s_max_u32 s43, s43, 32
        s_sub_u32 s43, s43, 32
        s_cmp_gt_u32 {sXCC}, {i}
        s_cselect_b32 s43, s43, 0
        s_add_u32 s42, s42, s43''')
    for i in range(8):
        a(f'''v_readlane_b32 s43, v2, {i}
        s_nop 3
        s_min_u32 s43, s43, 32
        s_add_u32 {sRANK}, s43, s42
        s_mov_b32 {sXCC}, {i}
        s_cmp_lt_u32 {sRANK}, 32
        s_cbranch_scc1 L_slot
        s_sub_u32 s42, {sRANK}, 32''')
    a(f'''s_branch L_fail
    L_slot:
    s_lshl_b32 {sSlot}, {sXCC}, 5
    s_add_u32 {sSlot}, {sSlot}, {sRANK}
    s_lshr_b32 {sL}, {sXCC}, 2
    s_and_b32 s42, {sXCC}, 3
    s_cmp_eq_u32 s42, 0
    s_cbranch_scc1 L_chain
    s_cmp_eq_u32 s42, 1
    s_cbranch_scc1 L_qkv
    s_cmp_eq_u32 s42, 3
    s_cbranch_scc1 L_g3
    s_cmp_lt_u32 {sIdx}, 16
    s_cbranch_scc1 L_att
    s_sub_u32 {sIdx}, {sIdx}, 16
    s_branch L_w
    L_g3:
    s_cmp_lt_u32 {sIdx}, 14
    s_cbranch_scc1 L_u
    s_sub_u32 {sIdx}, {sIdx}, 14
    s_cmp_lt_u32 {sIdx}, 8
    s_cbranch_scc1 L_d
    s_sub_u32 {sIdx}, {sIdx}, 8
    s_cmp_lt_u32 {sIdx}, 4
    s_cbranch_scc1 L_r1
    s_sub_u32 {sIdx}, {sIdx}, 4
    s_cmp_lt_u32 {sIdx}, 4
    s_cbranch_scc1 L_r2
    s_sub_u32 {sIdx}, {sIdx}, 4
    s_lshl_b32 s42, {sL}, 1
    s_add_u32 {sIdx}, {sIdx}, s42
    s_branch L_r0
    L_fail:
    s_mov_b64 exec, -1
    v_mov_b32 v1, 60
    v_mov_b32 v2, 1
    s_mov_b64 exec, 1
    buffer_atomic_add v2, v1, {DBG}, 0 offen
    L_done:
    L_end:
    s_endpgm''')
    def hook(w):
        if w == 'arrive':
            L = a.label('L_na')
            a(f'''s_cmp_lg_u32 {sW}, 0
            s_cbranch_scc1 {L}
            v_mov_b32 v126, 1
            v_mov_b32 v127, 32
            s_mov_b64 exec, 1
            buffer_atomic_add v126, v127, {DBG}, 0 offen
            s_mov_b64 exec, -1
            {L}:''')
        elif w == 'wait':
            L = a.label('L_gw')
            a(f'''v_mbcnt_lo_u32_b32 v126, -1, 0
            v_mbcnt_hi_u32_b32 v126, -1, v126
            v_min_u32 v126, 8, v126
            v_lshlrev_b32 v126, 2, v126
            {L}:
            buffer_load_dword v127, v126, {DBG}, 0 offen sc1
            s_add_u32 {sSpin}, {sSpin}, 0x1000
            s_cmp_ge_u32 {sSpin}, {SPIN}
            s_cbranch_scc1 L_fail
            s_waitcnt vmcnt(0)
            v_readlane_b32 s42, v127, 8
            s_nop 3
            s_cmp_ge_u32 s42, 256
            s_cbranch_scc1 {L}_ok
            s_sleep 4
            s_branch {L}
            {L}_ok:
            buffer_load_dword v127, v126, {DBG}, 0 offen sc1
            s_waitcnt vmcnt(0)
            v_cmp_ne_u32 vcc, 32, v127
            s_nop 3
            s_and_b32 {sMode}, vcc_lo, 0xff''')
            if trace: a('v_mov_b32 v127, 0'); mark(a, 'v126', 'v127', 0, 1)
    def role(lab, fn):
        a(f'.p2align 6\n{lab}:'); fn(); a('s_branch L_done')
    role('L_r0', lambda: rrole.emit_r(a, 'r0', local=local, hook=hook))
    role('L_r1', lambda: rrole.emit_r(a, 'r1', local=local, hook=hook))
    role('L_r2', lambda: rrole.emit_r(a, 'r2', local=local, hook=hook))
    role('L_att', lambda: att.emit_att(a, local=local, hook=hook, **att_kw))
    role('L_chain', lambda: chain.emit_chain(a, local=local, hook=hook, **chain_kw))
    role('L_qkv', lambda: gemm.emit_gemm(a, 'qkv', local=local, hook=hook, **qkv_kw))
    role('L_w', lambda: gemm.emit_gemm(a, 'w', local=local, hook=hook))
    role('L_u', lambda: gemm.emit_gemm(a, 'u', local=local, hook=hook))
    role('L_d', lambda: gemm.emit_gemm(a, 'd', local=local, hook=hook))
    return HEADER + single_kernel_file(a.text(), 256, 256, 163840)
if __name__ == '__main__':
    kw = json.loads(sys.argv[2]) if len(sys.argv) > 2 else {}
    open(sys.argv[1], 'w').write(gen(**kw))
```

```python
from asmlib import *
from lanefn import emit_lanefn
F_XN, F_X1, F_PW, F_H, F_PD = 0x0000, 0x0200, 0x0400, 0x0600, 0x0800
F_O   = 0x0A00
KVF_OFF = 0x2000
MF_OFF  = 0x8000
CH_OFF  = 0x100000
DBG_OFF = 0x200000
KV_OFF  = 0x0800000
Q_OFF   = 0x4800000
KVM_OFF = 0x6800000
O_OFF   = 0x8800000
PW_OFF  = 0xA800000
PD_OFF  = 0xC800000
H_OFF   = 0xD800000
XN_OFF  = 0xE800000
XR_OFF  = 0xEC00000
X1_OFF  = 0xF000000
X1N_OFF = 0xF400000
SPIN = 0x7fff0000
WS = 's[8:11]'; DBG = 's[12:15]'; SA = 's[16:19]'; SB = 's[20:23]'
P = lambda i: 64 + 2 * i
sW, sXCC, sRANK = 's24', 's25', 's26'

def build_srd(a, q, ptr, nbytes):
    a(f'''s_mov_b32 s{q}, s{P(ptr)}
    s_mov_b32 s{q+1}, s{P(ptr)+1}
    s_mov_b32 s{q+2}, {nbytes}
    s_mov_b32 s{q+3}, 0x00020000''')

def prologue(a, nwg=256, fake=False):
    a(f'''
    s_cmp_ge_u32 s2, {nwg}
    s_cbranch_scc1 L_end
    s_load_dwordx16 s[64:79], s[0:1], 0
    s_load_dwordx8 s[80:87], s[0:1], 64
    s_load_dwordx4 s[88:91], s[0:1], 96
    s_getreg_b32 {sXCC}, hwreg(HW_REG_XCC_ID, 0, 4)
    v_lshrrev_b32 v1, 6, v0
    v_and_b32 v0, 63, v0
    s_nop 0
    v_readfirstlane_b32 {sW}, v1
    s_waitcnt lgkmcnt(0)
    ''')
    build_srd(a, 8, 13, 0x10000000)
    build_srd(a, 12, 12, 256)
    if fake:
        a(f's_lshr_b32 {sXCC}, s2, 5\ns_cmp_lt_u32 s2, 40\ns_cselect_b32 {sXCC}, 5, {sXCC}')
    a(f'''
    s_and_b32 {sXCC}, {sXCC}, 7
    s_cmp_lg_u32 {sW}, 0
    s_cbranch_scc1 L_norank
    v_mov_b32 v3, 1
    s_lshl_b32 s27, {sXCC}, 2
    v_mov_b32 v4, s27
    v_mov_b32 v5, 0
    s_mov_b64 exec, 1
    buffer_atomic_add v3, v4, {DBG}, 0 offen sc0
    s_waitcnt vmcnt(0)
    ds_write_b32 v5, v3
    s_waitcnt lgkmcnt(0)
    s_mov_b64 exec, -1
    L_norank:
    s_barrier
    v_mov_b32 v5, 0
    ds_read_b32 v3, v5
    s_waitcnt lgkmcnt(0)
    v_readfirstlane_b32 {sRANK}, v3
    s_barrier
    ''')

def rng(kind, b, n):
    return f'{kind}[{b}:{b+n-1}]' if n > 1 else f'{kind}{b}'
def V(b, n=1): return rng('v', b, n)
def A(b, n=1): return rng('a', b, n)
class Reg:
    def __init__(s, kind, b): s.kind, s.b = kind, b
    def __call__(s, o=0, n=1): return rng(s.kind, s.b + o, n)

sL, sIdx, sSpin = 's27', 's26', 's52'
def poll(a, vdst, vaddr, soff, sneed, lab, sleep=0, first_issued=False):
    if first_issued: a(f's_branch {lab}_c')
    a(f'{lab}:')
    if sleep: a(f's_sleep {sleep}')
    a(f"""buffer_load_dword {vdst}, {vaddr}, {WS}, {soff} offen sc1
    s_waitcnt vmcnt(0)
    {lab}_c:
    v_cmp_gt_u32 vcc, {sneed}, {vdst}
    s_add_u32 {sSpin}, {sSpin}, 0x1000
    s_cmp_lt_u32 {sSpin}, {SPIN}
    s_cbranch_vccz {lab}_ok
    s_cbranch_scc1 {lab}
    s_branch L_fail
    {lab}_ok:""")
def publish(a, vtmp, vzero, sval, soff, ST, kind=None):
    a(f"""v_mov_b32 {vtmp}, {sval}
    s_mov_b64 exec, 1
    buffer_store_dword {vtmp}, {vzero}, {WS}, {soff} offen {ST}
    s_mov_b64 exec, -1""")
    if kind is not None: mark(a, vtmp, vzero, sval, kind)

TRACE = [False]
sSlot, sMode = 's4', 's5'
def mark(a, vtmp, vzero, sval, kind):
    if not TRACE[0]: return
    a(f"""s_memrealtime s[100:101]
    s_memtime s[96:97]
    s_lshl_b32 s98, {sSlot}, 2
    s_add_u32 s98, s98, {sW}
    s_lshl_b32 s98, s98, 1
    s_add_u32 s98, s98, {kind}
    s_lshl_b32 s98, s98, 7
    s_add_u32 s98, s98, {sval}
    s_lshl_b32 s98, s98, 2
    s_add_u32 s98, s98, {DBG_OFF}
    s_waitcnt lgkmcnt(0)
    v_mov_b32 {vtmp}, s100
    s_mov_b64 exec, 1
    buffer_store_dword {vtmp}, {vzero}, {WS}, s98 offen
    s_add_u32 s98, s98, 0x200000
    v_mov_b32 {vtmp}, s96
    buffer_store_dword {vtmp}, {vzero}, {WS}, s98 offen
    s_mov_b64 exec, -1""")
def both(a, local, fn):
    if local is not None: return fn(local)
    L = a.label('L_nonlocal')
    a(f's_cmp_lg_u32 {sMode}, 0\ns_cbranch_scc1 {L}')
    fn(True)
    a(f's_branch L_done\n{L}:')
    fn(False)
```

```python
import sys, json
import common
from common import *
import chain, gemm, att, rrole

HEADER = open('cdna_kernels/' + NAME + '.s.ref').read().split('; Override launch')[0]

def gen(trace=False, local=None, fakexcc=False, chain_kw={}, qkv_kw={}, att_kw={}, tlb=0, diag=False):
    common.TRACE[0] = trace
    a = Asm()
    if diag: a('s_memrealtime s[6:7]')
    prologue(a, fake=fakexcc)
    if diag:
        a(f'''s_not_b32 s6, s6
        v_mov_b32 v1, 48
        v_mov_b32 v2, s6
        buffer_atomic_umax v2, v1, {DBG}, 0 offen''')
    a(f'''s_mov_b32 {sSpin}, 0
    s_cmp_lt_u32 {sRANK}, 32
    s_cbranch_scc1 L_slot
    v_min_u32 v1, 7, v0
    v_lshlrev_b32 v1, 2, v1
    L_ovf:
    s_sleep 4
    buffer_load_dword v2, v1, {DBG}, 0 offen sc1
    s_waitcnt vmcnt(0)
    s_mov_b32 s42, 0''')
    for i in range(8): a(f'v_readlane_b32 s43, v2, {i}\ns_nop 3\ns_add_u32 s42, s42, s43')
    a(f'''s_add_u32 {sSpin}, {sSpin}, 0x1000
    s_cmp_ge_u32 {sSpin}, {SPIN}
    s_cbranch_scc1 L_fail
    s_cmp_lt_u32 s42, 256
    s_cbranch_scc1 L_ovf
    s_sub_u32 s42, {sRANK}, 32''')
    for i in range(8):
        a(f'''v_readlane_b32 s43, v2, {i}
        s_nop 3
        s_max_u32 s43, s43, 32
        s_sub_u32 s43, s43, 32
        s_cmp_gt_u32 {sXCC}, {i}
        s_cselect_b32 s43, s43, 0
        s_add_u32 s42, s42, s43''')
    for i in range(8):
        a(f'''v_readlane_b32 s43, v2, {i}
        s_nop 3
        s_min_u32 s43, s43, 32
        s_add_u32 {sRANK}, s43, s42
        s_mov_b32 {sXCC}, {i}
        s_cmp_lt_u32 {sRANK}, 32
        s_cbranch_scc1 L_slot
        s_sub_u32 s42, {sRANK}, 32''')
    a(f'''s_branch L_fail
    L_slot:''')
    if tlb:
        a(f'''v_lshlrev_b32 v1, {tlb}, v0
        s_lshl_b32 s42, {sW}, {tlb + 6}
        s_lshl_b32 s43, {sRANK}, {tlb + 8}
        s_add_u32 s42, s42, s43
        s_and_b32 s42, s42, 0xfffffff
        buffer_load_dword v2, v1, {WS}, s42 offen
        s_waitcnt vmcnt(0)''')
    a(f'''
    s_lshl_b32 {sSlot}, {sXCC}, 5
    s_add_u32 {sSlot}, {sSlot}, {sRANK}
    s_lshr_b32 {sL}, {sXCC}, 2
    s_and_b32 s42, {sXCC}, 3
    s_cmp_eq_u32 s42, 0
    s_cbranch_scc1 L_chain
    s_cmp_eq_u32 s42, 1
    s_cbranch_scc1 L_qkv
    s_cmp_eq_u32 s42, 3
    s_cbranch_scc1 L_g3
    s_cmp_lt_u32 {sIdx}, 16
    s_cbranch_scc1 L_att
    s_sub_u32 {sIdx}, {sIdx}, 16
    s_branch L_w
    L_g3:
    s_cmp_lt_u32 {sIdx}, 14
    s_cbranch_scc1 L_u
    s_sub_u32 {sIdx}, {sIdx}, 14
    s_cmp_lt_u32 {sIdx}, 8
    s_cbranch_scc1 L_d
    s_sub_u32 {sIdx}, {sIdx}, 8
    s_cmp_lt_u32 {sIdx}, 4
    s_cbranch_scc1 L_r1
    s_sub_u32 {sIdx}, {sIdx}, 4
    s_cmp_lt_u32 {sIdx}, 4
    s_cbranch_scc1 L_r2
    s_sub_u32 {sIdx}, {sIdx}, 4
    s_lshl_b32 s42, {sL}, 1
    s_add_u32 {sIdx}, {sIdx}, s42
    s_branch L_r0
    L_fail:
    s_mov_b64 exec, -1
    v_mov_b32 v1, 60
    v_mov_b32 v2, 1
    s_mov_b64 exec, 1
    buffer_atomic_add v2, v1, {DBG}, 0 offen
    L_done:''')
    if diag:
        a(f'''s_memrealtime s[6:7]
        s_waitcnt lgkmcnt(0)
        s_mov_b64 exec, 1
        v_mov_b32 v1, 52
        v_mov_b32 v2, s6
        buffer_atomic_umax v2, v1, {DBG}, 0 offen''')
    a(f'''L_end:
    s_endpgm''')
    def hook(w):
        if w == 'arrive':
            L = a.label('L_na')
            a(f'''s_cmp_lg_u32 {sW}, 0
            s_cbranch_scc1 {L}
            v_mov_b32 v126, 1
            v_mov_b32 v127, 32
            s_mov_b64 exec, 1
            buffer_atomic_add v126, v127, {DBG}, 0 offen
            s_mov_b64 exec, -1
            {L}:''')
        elif w == 'wait':
            L = a.label('L_gw')
            a(f'''v_mbcnt_lo_u32_b32 v126, -1, 0
            v_mbcnt_hi_u32_b32 v126, -1, v126
            v_min_u32 v126, 8, v126
            v_lshlrev_b32 v126, 2, v126
            {L}:
            buffer_load_dword v127, v126, {DBG}, 0 offen sc1
            s_add_u32 {sSpin}, {sSpin}, 0x1000
            s_cmp_ge_u32 {sSpin}, {SPIN}
            s_cbranch_scc1 L_fail
            s_waitcnt vmcnt(0)
            v_readlane_b32 s42, v127, 8
            s_nop 3
            s_cmp_ge_u32 s42, 256
            s_cbranch_scc1 {L}_ok
            s_sleep 4
            s_branch {L}
            {L}_ok:
            buffer_load_dword v127, v126, {DBG}, 0 offen sc1
            s_waitcnt vmcnt(0)
            v_cmp_ne_u32 vcc, 32, v127
            s_nop 3
            s_and_b32 {sMode}, vcc_lo, 0xff''')
            if trace: a('v_mov_b32 v127, 0'); mark(a, 'v126', 'v127', 0, 1)
    def role(lab, fn):
        a(f'.p2align 6\n{lab}:'); fn(); a('s_branch L_done')
    role('L_r0', lambda: rrole.emit_r(a, 'r0', local=local, hook=hook))
    role('L_r1', lambda: rrole.emit_r(a, 'r1', local=local, hook=hook))
    role('L_r2', lambda: rrole.emit_r(a, 'r2', local=local, hook=hook))
    role('L_att', lambda: att.emit_att(a, local=local, hook=hook, **att_kw))
    role('L_chain', lambda: chain.emit_chain(a, local=local, hook=hook, **chain_kw))
    role('L_qkv', lambda: gemm.emit_gemm(a, 'qkv', local=local, hook=hook, **qkv_kw))
    role('L_w', lambda: gemm.emit_gemm(a, 'w', local=local, hook=hook))
    role('L_u', lambda: gemm.emit_gemm(a, 'u', local=local, hook=hook))
    role('L_d', lambda: gemm.emit_gemm(a, 'd', local=local, hook=hook))
    return HEADER + single_kernel_file(a.text(), 256, 256, 163840)
if __name__ == '__main__':
    kw = json.loads(sys.argv[2]) if len(sys.argv) > 2 else {}
    open(sys.argv[1], 'w').write(gen(**kw))
```

```python
import sys, json
import common
from common import *
import chain, gemm, att, rrole

HEADER = open('cdna_kernels/' + NAME + '.s.ref').read().split('; Override launch')[0]

def gen(trace=False, local=None, fakexcc=False, chain_kw={}, qkv_kw={}, att_kw={}, tlb=0, diag=False):
    common.TRACE[0] = trace
    a = Asm()
    if diag: a('s_memrealtime s[6:7]')
    prologue(a, fake=fakexcc)
    if diag:
        a(f'''s_not_b32 s6, s6
        v_mov_b32 v1, 48
        v_mov_b32 v2, s6
        s_cmp_eq_u32 {sW}, 0
        s_cselect_b32 s6, 0, 0x1000
        s_mov_b64 exec, 1
        buffer_atomic_umax v2, v1, {DBG}, s6 offen
        s_mov_b64 exec, -1''')
    a(f'''s_mov_b32 {sSpin}, 0
    s_cmp_lt_u32 {sRANK}, 32
    s_cbranch_scc1 L_slot
    v_min_u32 v1, 7, v0
    v_lshlrev_b32 v1, 2, v1
    L_ovf:
    s_sleep 4
    buffer_load_dword v2, v1, {DBG}, 0 offen sc1
    s_waitcnt vmcnt(0)
    s_mov_b32 s42, 0''')
    for i in range(8): a(f'v_readlane_b32 s43, v2, {i}\ns_nop 3\ns_add_u32 s42, s42, s43')
    a(f'''s_add_u32 {sSpin}, {sSpin}, 0x1000
    s_cmp_ge_u32 {sSpin}, {SPIN}
    s_cbranch_scc1 L_fail
    s_cmp_lt_u32 s42, 256
    s_cbranch_scc1 L_ovf
    s_sub_u32 s42, {sRANK}, 32''')
    for i in range(8):
        a(f'''v_readlane_b32 s43, v2, {i}
        s_nop 3
        s_max_u32 s43, s43, 32
        s_sub_u32 s43, s43, 32
        s_cmp_gt_u32 {sXCC}, {i}
        s_cselect_b32 s43, s43, 0
        s_add_u32 s42, s42, s43''')
    for i in range(8):
        a(f'''v_readlane_b32 s43, v2, {i}
        s_nop 3
        s_min_u32 s43, s43, 32
        s_add_u32 {sRANK}, s43, s42
        s_mov_b32 {sXCC}, {i}
        s_cmp_lt_u32 {sRANK}, 32
        s_cbranch_scc1 L_slot
        s_sub_u32 s42, {sRANK}, 32''')
    a(f'''s_branch L_fail
    L_slot:''')
    if tlb:
        a(f'''v_lshlrev_b32 v1, {tlb}, v0
        s_lshl_b32 s42, {sW}, {tlb + 6}
        s_lshl_b32 s43, {sRANK}, {tlb + 8}
        s_add_u32 s42, s42, s43
        s_and_b32 s42, s42, 0xfffffff
        buffer_load_dword v2, v1, {WS}, s42 offen
        s_waitcnt vmcnt(0)''')
    a(f'''
    s_lshl_b32 {sSlot}, {sXCC}, 5
    s_add_u32 {sSlot}, {sSlot}, {sRANK}
    s_lshr_b32 {sL}, {sXCC}, 2
    s_and_b32 s42, {sXCC}, 3
    s_cmp_eq_u32 s42, 0
    s_cbranch_scc1 L_chain
    s_cmp_eq_u32 s42, 1
    s_cbranch_scc1 L_qkv
    s_cmp_eq_u32 s42, 3
    s_cbranch_scc1 L_g3
    s_cmp_lt_u32 {sIdx}, 16
    s_cbranch_scc1 L_att
    s_sub_u32 {sIdx}, {sIdx}, 16
    s_branch L_w
    L_g3:
    s_cmp_lt_u32 {sIdx}, 14
    s_cbranch_scc1 L_u
    s_sub_u32 {sIdx}, {sIdx}, 14
    s_cmp_lt_u32 {sIdx}, 8
    s_cbranch_scc1 L_d
    s_sub_u32 {sIdx}, {sIdx}, 8
    s_cmp_lt_u32 {sIdx}, 4
    s_cbranch_scc1 L_r1
    s_sub_u32 {sIdx}, {sIdx}, 4
    s_cmp_lt_u32 {sIdx}, 4
    s_cbranch_scc1 L_r2
    s_sub_u32 {sIdx}, {sIdx}, 4
    s_lshl_b32 s42, {sL}, 1
    s_add_u32 {sIdx}, {sIdx}, s42
    s_branch L_r0
    L_fail:
    s_mov_b64 exec, -1
    v_mov_b32 v1, 60
    v_mov_b32 v2, 1
    s_mov_b64 exec, 1
    buffer_atomic_add v2, v1, {DBG}, 0 offen
    L_done:''')
    if diag:
        a(f'''s_memrealtime s[6:7]
        s_waitcnt lgkmcnt(0)
        s_mov_b64 exec, 1
        v_mov_b32 v1, 52
        v_mov_b32 v2, s6
        buffer_atomic_umax v2, v1, {DBG}, 0 offen''')
    a(f'''L_end:
    s_endpgm''')
    def hook(w):
        if w == 'arrive':
            L = a.label('L_na')
            a(f'''s_cmp_lg_u32 {sW}, 0
            s_cbranch_scc1 {L}
            v_mov_b32 v126, 1
            v_mov_b32 v127, 32
            s_mov_b64 exec, 1
            buffer_atomic_add v126, v127, {DBG}, 0 offen
            s_mov_b64 exec, -1
            {L}:''')
        elif w == 'wait':
            L = a.label('L_gw')
            a(f'''v_mbcnt_lo_u32_b32 v126, -1, 0
            v_mbcnt_hi_u32_b32 v126, -1, v126
            v_min_u32 v126, 8, v126
            v_lshlrev_b32 v126, 2, v126
            {L}:
            buffer_load_dword v127, v126, {DBG}, 0 offen sc1
            s_add_u32 {sSpin}, {sSpin}, 0x1000
            s_cmp_ge_u32 {sSpin}, {SPIN}
            s_cbranch_scc1 L_fail
            s_waitcnt vmcnt(0)
            v_readlane_b32 s42, v127, 8
            s_nop 3
            s_cmp_ge_u32 s42, 256
            s_cbranch_scc1 {L}_ok
            s_sleep 4
            s_branch {L}
            {L}_ok:
            buffer_load_dword v127, v126, {DBG}, 0 offen sc1
            s_waitcnt vmcnt(0)
            v_cmp_ne_u32 vcc, 32, v127
            s_nop 3
            s_and_b32 {sMode}, vcc_lo, 0xff''')
            if trace: a('v_mov_b32 v127, 0'); mark(a, 'v126', 'v127', 0, 1)
    def role(lab, fn):
        a(f'.p2align 6\n{lab}:'); fn(); a('s_branch L_done')
    role('L_r0', lambda: rrole.emit_r(a, 'r0', local=local, hook=hook))
    role('L_r1', lambda: rrole.emit_r(a, 'r1', local=local, hook=hook))
    role('L_r2', lambda: rrole.emit_r(a, 'r2', local=local, hook=hook))
    role('L_att', lambda: att.emit_att(a, local=local, hook=hook, **att_kw))
    role('L_chain', lambda: chain.emit_chain(a, local=local, hook=hook, **chain_kw))
    role('L_qkv', lambda: gemm.emit_gemm(a, 'qkv', local=local, hook=hook, **qkv_kw))
    role('L_w', lambda: gemm.emit_gemm(a, 'w', local=local, hook=hook))
    role('L_u', lambda: gemm.emit_gemm(a, 'u', local=local, hook=hook))
    role('L_d', lambda: gemm.emit_gemm(a, 'd', local=local, hook=hook))
    return HEADER + single_kernel_file(a.text(), 256, 256, 163840)
if __name__ == '__main__':
    kw = json.loads(sys.argv[2]) if len(sys.argv) > 2 else {}
    open(sys.argv[1], 'w').write(gen(**kw))
```

```python
import math, struct
from common import *
def f32bits(x): return struct.unpack('<I', struct.pack('<f', x))[0]
C1 = f32bits(128 ** -0.5 * math.log2(math.e))

def emit_att(a, local=True, nseg=64, hook=None, npre=6):
    lb = a.label
    t0, t1 = 's42', 's43'
    sI, sNeed, sKV, sQ, sKVM, sO, sFq, sFm, sFout, sU, sLds = ['s%d' % r for r in range(28, 39)]
    vL16, vZ, vFq, vFl, vTr, vTr2, vT, vL8, vOs = ['v%d' % r for r in range(9)]
    M0_, M1_ = ['s[44:45]', 's[46:47]', 's[48:49]', 's[50:51]'], ['s[54:55]', 's[56:57]', 's[58:59]', 's[60:61]']
    lane, tmp = 'v100', 'v101'
    a(f'''v_mov_b32 {lane}, v0
    v_lshlrev_b32 {vL16}, 4, {lane}
    v_lshlrev_b32 {vL8}, 3, {lane}
    v_mov_b32 {vZ}, 0
    s_mov_b32 {sSpin}, 0
    s_and_b32 {sU}, {sW}, 1
    s_lshr_b32 {t0}, {sW}, 1
    s_lshl_b32 {t1}, {sIdx}, 1
    s_add_u32 {t1}, {t1}, {t0}
    s_lshl_b32 {t0}, {sL}, 11
    s_add_u32 {t0}, {t0}, {t1}
    s_lshl_b32 {sKV}, {t0}, 14
    s_add_u32 {sKV}, {sKV}, {KV_OFF}
    s_lshl_b32 {sKVM}, {t0}, 13
    s_add_u32 {sQ}, {sKVM}, {Q_OFF}
    s_add_u32 {sKVM}, {sKVM}, {KVM_OFF}
    s_lshl_b32 {t0}, {sU}, 12
    s_add_u32 {sQ}, {sQ}, {t0}
    s_lshl_b32 {sO}, {sL}, 24
    s_add_u32 {sO}, {sO}, {O_OFF}
    s_lshl_b32 {t0}, {t1}, 13
    s_add_u32 {sO}, {sO}, {t0}
    s_lshl_b32 {t0}, {sU}, 8
    s_add_u32 {sO}, {sO}, {t0}
    s_lshl_b32 {t0}, {sL}, 5
    s_add_u32 {t0}, {t0}, {t1}
    s_lshl_b32 {t0}, {t0}, 7
    s_add_u32 {sFq}, {t0}, {KVF_OFF + 0x2000}
    s_add_u32 {sFm}, {t0}, {MF_OFF}
    s_lshl_b32 {sFout}, {sL}, 2
    s_lshr_b32 {t0}, {t1}, 3
    s_add_u32 {sFout}, {sFout}, {t0}
    s_lshl_b32 {sFout}, {sFout}, 7
    s_and_b32 {t0}, {t1}, 7
    s_lshl_b32 {t0}, {t0}, 1
    s_add_u32 {t0}, {t0}, {sU}
    s_lshl_b32 {t0}, {t0}, 2
    s_add_u32 {sFout}, {sFout}, {t0}
    s_add_u32 {sFout}, {sFout}, {F_O}
    s_lshl_b32 {sLds}, {sW}, 12
    v_and_b32 {vFq}, 0x30, {vL16}
    v_and_b32 v15, 15, {lane}
    v_lshlrev_b32 v15, 2, v15
    s_lshl_b32 s53, {sL}, 8
    s_add_u32 s53, s53, {F_XN + 256}
    s_mov_b32 s92, {sKV}
    s_mov_b32 s93, {sQ}
    s_mov_b32 s94, {sKVM}
    s_mov_b32 s95, {sO}
    s_mov_b32 s40, {C1}
    s_mov_b32 s41, {C1}''')
    publish(a, vT, vZ, 0, sFout, 'sc1')
    a('s_waitcnt vmcnt(0)\ns_barrier')
    if hook: hook('arrive')
    emit_lanefn(a, vTr, lane, lambda l: (16 * (l >> 5) + 4 * ((l >> 4) & 1) + ((l >> 2) & 3)) * 32 + (((l & 3) ^ ((l >> 4) & 1)) * 8), tmp)
    a(f'v_add_u32 {vTr}, {sLds}, {vTr}\nv_xor_b32 {vTr2}, 16, {vTr}')
    emit_lanefn(a, vOs, lane, lambda l: (l >> 5) * 1024 + ((l >> 4) & 1) * 512 + (l & 15) * 16, tmp)
    a(f'''v_and_b32 v102, 15, {lane}
    v_lshrrev_b32 v103, 4, {lane}
    v_lshlrev_b32 v103, 2, v103
    v_sub_u32 v102, v102, v103''')
    for i in range(4):
        a(f'''v_cmp_le_i32 vcc, {i}, v102
        s_nop 3
        s_cmp_eq_u32 {sU}, 0
        s_cselect_b64 {M0_[i]}, vcc, -1
        s_cselect_b64 {M1_[i]}, 0, vcc''')
    a('v_mov_b32 v9, 0xff800000')
    for r in (89, 90): a(f'v_mov_b32 v{r}, 0')
    if hook: hook('gate_all' if OPT['gate_w'] else 'gate')
    prewarm(a, RING['A'], sQ, 32 * 8192, vL16, [0, 1024, 2048, 3072], t0)
    prewarm(a, RING['B'], sO, 262144, vOs, [0, 2048, 4096, 6144], t0)
    if hook: hook('wait')
    def loop(local):
        STL = '' if local else 'sc1'
        X = lambda k: V(64 + 4 * k, 4)
        VM = lambda w: V(80 + 2 * w, 2)
        O = lambda E: 160 + 4 * E
        vFq2 = 'v14'; sNq, sKVl, sK1, sV0, sV1 = 's39', 's62', 's63', 's16', 's17'
        Lfin = lb('L_fin')
        def loads(b):
            L = lambda r, so, o: f'buffer_load_dwordx4 {A(b + r, 4)}, {vL16}, {WS}, {so} offen offset:{o} sc1 {OPT["nt_att"] if r >= 16 else ""}'
            return ([L(4 * k, sQ, k * 1024) for k in range(4)] + [L(16 + 4 * k, sKV, k * 1024) for k in range(4)] +
                    [L(32 + 4 * k, sK1, k * 1024) for k in range(4)] + [L(48 + 4 * E, sV1 if E >= 4 else sV0, (E % 4) * 1024) for E in range(8)])
        def bases():
            a(f's_add_u32 {sK1}, {sKV}, 4096\ns_add_u32 {sV0}, {sKV}, 8192\ns_add_u32 {sV1}, {sKV}, 12288')
        a(f's_mov_b32 {sI}, 0\ns_mov_b32 {sNeed}, 1')
        bases()
        poll(a, vFq2, vFq, sFq, sNeed, lb('L_pq'), sleep=1)
        for x in loads(0): a(x)
        a('s_waitcnt vmcnt(0)')
        tr = Tracer(a, [20, 22, 64, 66, 68, 70, 72, 74], 'v98', 'v99')
        Ltop = lb('L_top')
        a(f'{Ltop}:')
        for half in range(2):
            b = 80 * half
            Q = lambda k: A(b + 4 * k, 4)
            K = lambda u, k: A(b + 16 + 16 * u + 4 * k, 4)
            Vx = lambda E: A(b + 48 + 4 * E, 4)
            pf = loads(80 - b)
            def P(n=1):
                for _ in range(n):
                    if pf: a(pf.pop(0))
            Lp = lb('L_pm')
            fl = f'buffer_load_dword {vFq2}, {vFq}, {WS}, {sFq} offen sc1\nbuffer_load_dword v96, v15, {WS}, s53 offen sc1\nbuffer_load_dword {vFl}, {vZ}, {WS}, {sFm} offen sc1'
            a(fl)
            for k in range(4):
                for u in range(2):
                    a(f"v_mfma_f32_16x16x32_bf16 {V(104+4*u,4)}, {K(u,k)}, {Q(k)}, {'0' if k == 0 else V(104+4*u,4)}")
            a(f'''s_add_u32 {sNq}, {sNeed}, 1
            s_min_u32 {sNq}, {sNq}, {nseg}
            s_sub_u32 {sKVl}, {sNeed}, {RING['B']}
            s_max_i32 {sKVl}, {sKVl}, 0''')
            ringptr(a, sNq, RING['A'], [(sKV, 's92', 32 * 16384), (sQ, 's93', 32 * 8192)], t0, sub=1)
            ringptr(a, sI, RING['A'], [(sKVM, 's94', 32 * 8192)], t0)
            ringptr(a, sI, RING['B'], [(sO, 's95', 262144)], t0)
            bases()
            a(f'''s_mov_b32 m0, {sLds}
            s_add_u32 {t0}, {sKVM}, 4096
            s_branch {Lp}_c
            {Lp}:
            {fl}
            {Lp}_c:
            s_waitcnt vmcnt(0)
            v_cmp_gt_u32 vcc, {sNeed}, {vFl}
            v_cmp_gt_u32 s[18:19], {sNq}, {vFq2}
            v_cmp_gt_u32 s[6:7], {sKVl}, v96
            s_add_u32 {sSpin}, {sSpin}, 0x1000
            s_nop 1
            s_or_b64 vcc, vcc, s[18:19]
            s_or_b64 vcc, vcc, s[6:7]
            s_cbranch_scc0 {Lp}_ok
            s_cmp_lt_u32 {sSpin}, {SPIN}
            s_cbranch_scc1 {Lp}
            s_branch L_fail
            {Lp}_ok:''')
            tr(1)
            for i in range(4): a(f'buffer_load_dwordx4 {vL16}, {WS}, {sKVM} offen offset:{i*1024} sc1 {OPT["nt_att"]} lds')
            for w in range(4): a(f'buffer_load_dwordx2 {VM(w)}, {vL8}, {WS}, {t0} offen offset:{w*512} sc1 {OPT["nt_att"]}')
            P(npre)
            for u in range(2):
                for i in range(4): a(f'v_cndmask_b32 v{104+4*u+i}, v9, v{104+4*u+i}, {(M1_ if u else M0_)[i]}')
            a(f'''v_max3_f32 v10, v104, v105, v106
            v_max3_f32 v11, v107, v108, v109
            v_max3_f32 v10, v10, v110, v111
            v_max_f32 v10, v10, v11
            s_add_u32 {sNeed}, {sNeed}, 1''')
            tr(2)
            for k in range(4):
                a(f's_waitcnt vmcnt({7 - k + npre})')
                a(f'ds_read_b64_tr_b16 {V(64+4*k,2)}, {vTr} offset:{k*1024}')
                a(f'ds_read_b64_tr_b16 {V(66+4*k,2)}, {vTr2} offset:{k*1024+256}')
            P()
            for k in range(4):
                a(f's_waitcnt lgkmcnt({6-2*k})')
                a(f"v_mfma_f32_16x16x32_bf16 v[112:115], {X(k)}, {Q(k)}, {'0' if k == 0 else 'v[112:115]'}")
            tr(3)
            P()
            a('''s_nop 6
            v_max3_f32 v11, v10, v112, v113
            v_max3_f32 v10, v10, v112, v113
            s_nop 0''')
            P()
            a('''v_permlane32_swap_b32 v10, v11
            v_max_f32 v12, v10, v11
            v_max_f32 v13, v10, v11
            s_nop 1
            v_permlane16_swap_b32 v12, v13
            v_max_f32 v10, v12, v13
            v_mul_f32 v10, s40, v10''')
            P()
            for r in range(104, 114, 2):
                a(f'v_pk_fma_f32 v[{r}:{r+1}], v[{r}:{r+1}], s[40:41], v[10:11] op_sel_hi:[1,1,0] neg_lo:[0,0,1] neg_hi:[0,0,1]')
            sm = '''v_exp_f32 v104, v104
            v_exp_f32 v105, v105
            v_exp_f32 v106, v106
            v_cvt_pk_bf16_f32 v92, v104, v105
            v_exp_f32 v107, v107
            v_exp_f32 v108, v108
            v_cvt_pk_bf16_f32 v93, v106, v107
            v_exp_f32 v109, v109
            v_pk_add_f32 v[12:13], v[104:105], v[106:107]
            v_exp_f32 v110, v110
            v_cvt_pk_bf16_f32 v94, v108, v109
            v_exp_f32 v111, v111
            v_pk_add_f32 v[12:13], v[12:13], v[108:109]
            v_exp_f32 v112, v112
            v_cvt_pk_bf16_f32 v95, v110, v111
            v_exp_f32 v113, v113
            v_pk_add_f32 v[12:13], v[12:13], v[110:111]
            v_cvt_pk_bf16_f32 v88, v112, v113
            v_cvt_pk_bf16_f32 v91, v112, v113
            v_pk_add_f32 v[12:13], v[12:13], v[112:113]'''.split('\n')
            for n, x in enumerate(sm):
                a(x)
                if n in (4, 11): P()
            a(f's_waitcnt vmcnt({20 - len(pf)})')
            side = ['v_add_f32 v10, v12, v13', 'v_add_f32 v11, v12, v13', 's_nop 1', 'v_permlane32_swap_b32 v10, v11',
                    'v_add_f32 v12, v10, v11', 'v_add_f32 v13, v10, v11', 's_nop 1', 'v_permlane16_swap_b32 v12, v13',
                    'v_add_f32 v10, v12, v13', 'v_rcp_f32 v10, v10', 's_nop 0']
            def fin(p):
                out = [f'v_mul_f32 v{O(2*p)+i}, v{O(2*p)+i}, v10' for i in range(8)]
                out += [f'v_cvt_pk_bf16_f32 v{116+4*(p&1)+i}, v{O(2*p)+2*i}, v{O(2*p)+2*i+1}' for i in range(4)]
                out += [f'buffer_store_dwordx4 {V(116+4*(p&1),4)}, {vOs}, {WS}, {t0 if p >= 2 else sO} offen offset:{(p&1)*2048} {STL}']
                return out
            tr(4)
            a(f's_add_u32 {t0}, {sO}, 4096')
            n = 0
            for p in range(4):
                for ins in ([f'v_mfma_f32_16x16x32_bf16 {V(O(2*p+t),4)}, {Vx(2*p+t)}, v[92:95], 0' for t in range(2)] +
                            [f'v_mfma_f32_16x16x16_bf16 {V(O(2*p+t),4)}, {VM(p)}, {"v[90:91]" if t else "v[88:89]"}, {V(O(2*p+t),4)}' for t in range(2)]):
                    a(ins); n += 1
                    if n == 7: side += fin(0)
                    if n == 11: side += fin(1)
                    if n == 15: side += fin(2)
                    for _ in range(2):
                        if side: a(side.pop(0))
                    if n % 3 == 1: P()
            side += fin(3)
            for x in side: a(x)
            tr(5)
            late = len(pf)
            P(late)
            a(f'''s_add_u32 {sI}, {sI}, 1
            s_waitcnt vmcnt({late})''')
            tr(6)
            publish(a, vT, vZ, sI, sFout, STL, 0)
            tr.flush(sI); tr(0)
            if late: a('s_waitcnt vmcnt(1)')
            if half: a(f's_cmp_eq_u32 {sI}, {nseg}\ns_cbranch_scc0 {Ltop}')
    both(a, local, loop)
```

```python
import math, struct
from common import *

def f32bits(x): return struct.unpack('<I', struct.pack('<f', x))[0]
C1 = f32bits(128 ** -0.5 * math.log2(math.e))
L_K, L_M, L_T, L_O, L_S = 65536, 81920, 90112, 94208, 96256
MISC = 65536
QK_RES = [('q', 0), ('k', 0), ('q', 1), ('k', 1), ('q', 2), ('k', 2)]
QK_SLOT = [6, 7, 8, 9, 0, 1]

def alloc_frags():
    pool = [Reg('a', 8 * i) for i in range(32)] + [Reg('v', 128 + 8 * i) for i in range(16)]
    home = {}
    for m in 'qkv':
        for sg in range(8):
            for tau in range(2):
                home[(m, sg, tau)] = None if (m, sg) in QK_RES else pool.pop(0)
    for sp in range(2):
        for T in range(8):
            home[('o', sp, T)] = None if (sp == 1 and T >= 4) else pool.pop(0)
    assert not pool
    return home

def emit_chain(a, local=True, stamps=False, nseg=64, wait1=False, d1=6, d2=6, fine=False, nopub=False, noarm=False, timing=False, d3=-1, vg=(4, 4, 2, 2), perm=True, trace=False, rot=True, hook=None, gate_at=(8, 24)):
    ST = 'sc1'
    home = alloc_frags()
    sH, sS, sTag, sNTag = sIdx, 's28', 's29', 's30'
    sP0, sP1, sI0, sI1 = 's31', 's32', 's33', 's34'
    sMcur, sMnext, sMarm = 's35', 's36', 's37'
    sKV, sKVM, sKVF, sMF = 's38', 's39', 's40', 's41'
    t0, t1 = 's42', 's43'
    mO, mLo, mK = 's[44:45]', 's[46:47]', 's[48:49]'
    sC1 = 's50'; sG = 's53'
    sKVn, sKVv, sKVlast, sM0k = 's60', 's61', 's62', 's63'
    sGa, sWx, sPub, sNeed = 's54', 's55', 's3', 's38'
    sGb, sG2, bKVM = 's48', 's49', 's6'
    vL16, vLm, vLa, vLb, vLo, vTw, vTr, vOw, vPst, vMst, vIdx, vKr, vFlag, vVex = [f'v{i}' for i in range(14)]
    M = lambda sg: V(16 + 4 * sg, 4)
    lb = a.label
    def stamp(k, f=False):
        if fine and not f and k < 5: return
        if f and not fine: return
        if stamps:
            a(f'''s_memtime s[56:57]
            s_waitcnt lgkmcnt(0)
            s_sub_u32 s59, s56, s58
            s_add_u32 s{92+k}, s{92+k}, s59
            s_mov_b32 s58, s56''')
    TRK = '' if trace == 1 else 'real'
    TR = [92, 94, 96, 98, 100, 56, 58]
    def tr(k):
        if trace: a(f's_mem{TRK}time s[{TR[k]}:{TR[k]+1}]')
    lane = 'v40'; tmp = 'v41'
    a(f'v_mov_b32 {lane}, v0')
    a(f'v_lshlrev_b32 {vL16}, 4, {lane}')
    a(f'''
    s_mul_i32 {t0}, {sL}, 0x80000
    s_add_u32 {t0}, {t0}, {CH_OFF}
    s_lshl_b32 {t1}, {sW}, 16
    s_add_u32 {sP0}, {t0}, {t1}
    s_add_u32 {sP1}, {sP0}, 32768
    s_lshl_b32 {t1}, {sH}, 13
    s_add_u32 {sI0}, {t0}, {t1}
    s_add_u32 {sI1}, {sI0}, 4096
    s_add_u32 {sMcur}, {t0}, 0x40000
    s_add_u32 {sMnext}, {t0}, 0x42000
    s_add_u32 {sMarm}, {t0}, 0x44000
    s_lshl_b32 {t0}, {sL}, 11
    s_add_u32 {t0}, {t0}, {sH}
    s_lshl_b32 {sKV}, {t0}, 14
    s_add_u32 {sKV}, {sKV}, {KV_OFF}
    s_lshl_b32 {sKVM}, {t0}, 13
    s_add_u32 {sKVM}, {sKVM}, {KVM_OFF - L_T}
    s_lshl_b32 {t0}, {sL}, 5
    s_add_u32 {t0}, {t0}, {sH}
    s_lshl_b32 {sKVF}, {t0}, 7
    s_add_u32 {sKVF}, {sKVF}, {KVF_OFF}
    s_lshl_b32 {sMF}, {t0}, 7
    s_add_u32 {sMF}, {sMF}, {MF_OFF}
    s_mov_b32 s44, 0xcccccccc
    s_mov_b32 s45, 0xcccccccc
    s_mov_b32 s46, -1
    s_mov_b32 s47, 0
    s_mov_b32 s50, {C1}
    s_mov_b32 s51, {C1}
    s_mov_b32 {sSpin}, 0
    s_lshl_b32 {sG}, {sW}, 11
    s_add_u32 {sKV}, {sKV}, {sG}
    ''')
    emit_lanefn(a, vMst, lane, lambda l: ((l >> 3) & 1) * 1024 + (((l >> 1) & 3) * 16 + 2 * (l & 1) + ((l >> 4) & 1)) * 16, tmp, 5)
    a(f'''s_lshr_b32 {t0}, {sH}, 3
    s_lshl_b32 {t0}, {t0}, 11
    s_and_b32 {t1}, {sH}, 3
    s_lshl_b32 {t1}, {t1}, 6
    s_add_u32 {t0}, {t0}, {t1}
    s_and_b32 {t1}, {sH}, 4
    s_lshl_b32 {t1}, {t1}, 1
    s_add_u32 {t0}, {t0}, {t1}
    v_add_u32 {vMst}, {t0}, {vMst}''')
    L = lb('L_noarm')
    a(f'''s_cmp_lg_u32 {sW}, 0
    s_cbranch_scc1 {L}
    v_mov_b32 v16, -1
    v_mov_b32 v17, -1
    v_mov_b64 v[20:21], 0
    v_mov_b64 v[22:23], 0
    s_mov_b64 exec, {mLo}
    buffer_store_dwordx2 v[16:17], {vMst}, {WS}, {sMcur} offen {ST}
    buffer_store_dwordx2 v[16:17], {vMst}, {WS}, {sMnext} offen {ST}
    buffer_store_dwordx2 v[16:17], {vMst}, {WS}, {sMarm} offen {ST}
    s_mov_b64 exec, 1
    buffer_store_dword v20, v20, {WS}, {sMF} offen {ST}
    s_mov_b64 exec, -1''')
    for i in range(8):
        a(f'buffer_store_dwordx4 v[20:23], {vL16}, {WS}, {sI0 if i < 4 else sI1} offen offset:{(i%4)*1024} {ST}')
    a(f'{L}:')
    vD0, vD1, vR0, vR1, vRo, vA0, vA1 = 'v42', 'v43', 'v44', 'v45', 'v46', 'v47', 'v48'
    vDo = ['v50', 'v51', 'v52', 'v53']
    emit_lanefn(a, vD0, lane, lambda l: (l >> 4) * 8192 + (((l & 15) ^ (2 * ((l >> 4) & 1))) * 16), tmp)
    a(f'''s_and_b32 {t0}, {sW}, 1
    s_lshl_b32 {t0}, {t0}, 7
    v_xor_b32 {vD0}, {t0}, {vD0}
    v_xor_b32 {vD1}, 64, {vD0}''')
    def qk_rd(l):
        gb, pos, cp = l >> 4, (l >> 2) & 3, l & 3
        z, half, b = gb >> 1, pos >> 1, pos & 1
        rho = 2 * z + half + 16 * (gb & 1) + 4 * b
        p = cp >> 1
        return rho * 256 + ((p ^ (2 * half + 4 * b + 8 * (gb & 1))) * 16) + (cp & 1) * 8
    emit_lanefn(a, vR0, lane, qk_rd, tmp)
    a(f'''s_lshl_b32 {t0}, {sW}, 6
    v_xor_b32 {vR0}, {t0}, {vR0}
    v_xor_b32 {vR1}, 32, {vR0}''')
    a(f'''s_and_b32 {t0}, {sW}, 1
    s_lshl_b32 {t0}, {t0}, 5
    v_xor_b32 {vDo[0]}, {t0}, {vL16}
    v_xor_b32 {vDo[1]}, 16, {vDo[0]}''')
    def o_rd(l):
        gb, pos, cp = l >> 4, (l >> 2) & 3, l & 3
        z, half, b = gb >> 1, pos >> 1, pos & 1
        e = 16 * (gb & 1) + 8 * z + 4 * half + b
        return e * 1024 + ((4 * cp) ^ (b | (half << 1))) * 16
    emit_lanefn(a, vRo, lane, o_rd, tmp)
    a(f'''s_lshl_b32 {t0}, {sW}, 8
    v_add_u32 {vRo}, {t0}, {vRo}''')
    chunks = [('o', 0, i) for i in range(4)] + [('v', sg) for sg in range(8)]
    for sg in range(3, 8): chunks += [('q', sg), ('k', sg)]
    chunks += [('o', 1, i) for i in range(4)] + QK_RES
    assert len(chunks) == 32
    srd = {'q': 16, 'k': 20, 'v': 56, 'o': 60}
    build_srd(a, 16, 2, 4 << 20); build_srd(a, 20, 3, 4 << 20); build_srd(a, 56, 4, 4 << 20); build_srd(a, 60, 5, 4 << 20)
    sWq, sWo, sM0 = 's54', 's55', 's3'
    a(f'''s_lshl_b32 {sWq}, {sW}, 17
    s_lshl_b32 {t0}, {sH}, 8
    s_add_u32 {sWq}, {sWq}, {t0}
    s_lshl_b32 {sWo}, {sH}, 17
    s_lshl_b32 {t0}, {sW}, 12
    s_add_u32 {sWo}, {sWo}, {t0}
    s_lshl_b32 {sM0}, {sW}, 12''')
    def issue(c):
        ch = chunks[c]; slot = (c % 10) * 16384
        q = srd[ch[0]]
        for i in range(4):
            a(f's_add_u32 m0, {sM0}, {slot + i * 1024}')
            if ch[0] == 'o':
                a(f's_add_u32 {t0}, {sWo}, {(ch[1] * 64 + ch[2] * 16 + i) * 1024}')
                a(f'buffer_load_dwordx4 {vDo[i & 1]}, s[{q}:{q+3}], {t0} offen {OPT["wc"]} lds')
            else:
                a(f's_add_u32 {t0}, {sWq}, {(ch[1] * 64 + 4 * i) * 8192}')
                a(f'buffer_load_dwordx4 {vD1 if i & 1 else vD0}, s[{q}:{q+3}], {t0} offen {OPT["wc"]} lds')
    readiter = {c: (c if chunks[c][0] != 'o' else c + 3 - chunks[c][2]) for c in range(32)}
    issue_at = {}
    for c in range(10, 32): issue_at.setdefault(readiter[c - 10] + 1, []).append(c)
    La = lb('L_l1arr')
    a(f's_cmp_eq_u32 {sL}, 0\ns_cbranch_scc1 {La}\ns_waitcnt vmcnt(0)')
    hook('arrive'); hook('gate')
    a(f'{La}:')
    for c in range(10): issue(c)
    a(f's_cmp_lg_u32 {sL}, 0\ns_cbranch_scc1 {La}_b\ns_waitcnt vmcnt(40)')
    hook('arrive')
    a(f'{La}_b:')
    issued = 10
    a(f'''s_lshl_b32 {t0}, {sW}, 12
    v_add_u32 {vLa}, {t0}, {vL16}
    v_add_u32 {vLb}, {6*16384}, {vLa}
    s_lshl_b32 {t0}, {sW}, 13
    s_add_u32 {t0}, {t0}, 32768
    v_add_u32 {vLo}, {t0}, {vL16}
    v_add_u32 {vLm}, {MISC}, {vL16}''')
    def res_addr(slot, tau, hf):
        return (vLa, slot * 16384 + tau * 2048 + hf * 1024) if slot < 2 else (vLb, (slot - 6) * 16384 + tau * 2048 + hf * 1024)
    pending_wb = []
    for n in range(33):
        if n < 32:
            a(f's_waitcnt vmcnt({4 * (issued - n - 1)}) lgkmcnt(0)')
        else:
            a('s_waitcnt lgkmcnt(0)')
        a('s_barrier')
        for c in issue_at.get(n, []):
            issue(c); issued += 1
        if n in gate_at: hook('gate_open')
        for ins in pending_wb: a(ins)
        pending_wb = []
        if n == 32: break
        ch = chunks[n]; slot = n % 10
        if ch[0] == 'o':
            if ch[2] != 3: continue
            base = (slot - 3) * 16384
            for T in range(8):
                h_ = home[('o', ch[1], T)] or Reg('v', 56 + 8 * (T - 4))
                if T % 2 == 0:
                    a(f'v_xor_b32 {vA0}, {16 * (T >> 1)}, {vRo}')
                    if base: a(f'v_add_u32 {vA0}, {base}, {vA0}')
                for q in range(4):
                    a(f'ds_read_b64_tr_b16 {h_(2*q, 2)}, {vA0} offset:{(q >> 1) * 32768 + (q & 1) * 2048 + (T & 1) * 8}')
                if home[('o', ch[1], T)] is None:
                    for hf in range(2):
                        pending_wb.append(f'ds_write_b128 {vLo}, {h_(4*hf, 4)} offset:{(T - 4) * 2048 + hf * 1024}')
        else:
            a(f'v_add_u32 {vA0}, {slot * 16384}, {vR0}')
            a(f'v_add_u32 {vA1}, {slot * 16384}, {vR1}')
            for tau in range(2):
                h_ = home[(ch[0], ch[1], tau)] or Reg('v', 88 + 16 * (n & 1) + 8 * tau)
                for q in range(4):
                    a(f'ds_read_b64_tr_b16 {h_(2*q, 2)}, {vA1 if tau else vA0} offset:{(q >> 1) * 8192 + (q & 1) * 2048}')
                if home[(ch[0], ch[1], tau)] is None:
                    assert QK_SLOT[QK_RES.index(ch)] == slot
                    for hf in range(2):
                        r, o = res_addr(slot, tau, hf)
                        pending_wb.append(f'ds_write_b128 {r}, {h_(4*hf, 4)} offset:{o}')
    emit_lanefn(a, vTw, lane, lambda l: (l & 15) * 32 + (((l >> 4) ^ ((l >> 2) & 3)) * 8), tmp)
    a(f'''s_lshl_b32 {t0}, {sW}, 10
    s_add_u32 {t0}, {t0}, {L_T}
    v_add_u32 {vTw}, {t0}, {vTw}''')
    emit_lanefn(a, vTr, lane, lambda l: (16 * (l >> 5) + 4 * ((l >> 4) & 1) + ((l >> 2) & 3)) * 32 + (((l & 3) ^ ((l >> 4) & 1)) * 8), tmp)
    a(f'v_add_u32 {vTr}, {L_T}, {vTr}')
    emit_lanefn(a, vOw, lane, lambda l: ((l >> 5) * 16 + 4 * ((l >> 2) & 3) + 2 * ((l >> 4) & 1) + (l & 1)) * 16, tmp)
    a(f'''s_lshl_b32 {t0}, {sW}, 9
    s_add_u32 {t0}, {t0}, {L_O}
    v_add_u32 {vOw}, {t0}, {vOw}''')
    if perm:
        emit_lanefn(a, vPst, lane, lambda l: (l >> 4) * 8192 + (l >> 4) * 1024 + (l & 15) * 16, tmp)
        a(f'''s_and_b32 {t0}, {sH}, 15
        s_lshl_b32 {t0}, {t0}, 8
        v_xor_b32 {vPst}, {t0}, {vPst}
        s_and_b32 {t0}, {sH}, 16
        s_lshl_b32 {t0}, {t0}, 8
        s_add_u32 {sP0}, {sP0}, {t0}
        s_xor_b32 {t0}, {t0}, 4096
        s_add_u32 {sP1}, {sP1}, {t0}''')
    else:
        emit_lanefn(a, vPst, lane, lambda l: (l >> 4) * 8192 + (l & 15) * 16, tmp)
        a(f'''s_lshl_b32 {t0}, {sH}, 8
        s_add_u32 {sP0}, {sP0}, {t0}
        s_add_u32 {sP1}, {sP1}, {t0}''')
    emit_lanefn(a, vIdx, lane, lambda l: 0xEEEE if l & 2 else 0x4444, tmp)
    a(f'v_add_u32 {vKr}, {L_K}, {vL16}')
    a(f'''s_lshl_b32 {t0}, {sW}, 9
    s_add_u32 {t0}, {t0}, {4096 + L_T}
    v_lshlrev_b32 {vVex}, 3, {lane}
    v_add_u32 {vVex}, {t0}, {vVex}''')
    a(f'''v_and_b32 v14, 15, {lane}
    v_and_b32 v15, 1, v14
    v_lshlrev_b32 v15, 4, v15
    v_mov_b32 v54, 0x3f80
    v_lshlrev_b32 v15, v15, v54
    v_lshrrev_b32 v14, 1, v14''')
    for j in range(4):
        a(f'v_cmp_eq_u32 vcc, {j}, v14\ns_nop 1\nv_cndmask_b32 v{60+j}, 0, v15, vcc')
    a(f'ds_write_b128 {vLm}, v[60:63] offset:{L_S - MISC}')
    Lskip = lb('L_init_skip'); Lw = lb('L_team'); Lf0 = lb('L_f0')
    hook('wait')
    a(f's_mov_b32 {sSpin}, 0')
    build_srd(a, 16, 1, 8192)
    emit_lanefn(a, 'v48', lane, lambda l: ((l >> 4) & 1) * 1024 + (32 * ((l >> 2) & 3) + (l & 3)) * 2, tmp, 5)
    a(f'''s_cmp_lg_u32 {sW}, 0
    s_cbranch_scc1 {Lskip}
    s_and_b32 {t0}, {sH}, 3
    s_lshl_b32 {t0}, {t0}, 11
    s_lshr_b32 {t1}, {sH}, 3
    s_lshl_b32 {t1}, {t1}, 8
    s_add_u32 {t0}, {t0}, {t1}
    s_and_b32 {t1}, {sH}, 4
    s_lshl_b32 {t1}, {t1}, 3
    s_add_u32 {t0}, {t0}, {t1}
    buffer_load_ushort v50, v48, {SA}, {t0} offen
    buffer_load_ushort v51, v48, {SA}, {t0} offen offset:8
    buffer_load_ushort v52, v48, {SA}, {t0} offen offset:16
    buffer_load_ushort v53, v48, {SA}, {t0} offen offset:24
    s_waitcnt vmcnt(0)
    v_lshl_or_b32 v52, v53, 16, v52
    v_lshl_or_b32 v53, v51, 16, v50
    v_min_u32 v50, -2, v53
    v_mov_b32 v51, v52
    s_mov_b64 exec, {mLo}
    buffer_store_dwordx2 v[50:51], {vMst}, {WS}, {sMcur} offen {ST}
    s_mov_b64 exec, -1
    {Lskip}:
    s_mov_b32 {sS}, -1
    s_mov_b32 {t0}, {sMarm}
    s_mov_b32 {sMarm}, {sMnext}
    s_mov_b32 {sMnext}, {sMcur}
    s_mov_b32 {sMcur}, {t0}
    s_mov_b32 {bKVM}, {sKVM}
    s_mov_b32 {sKVlast}, {sKV}
    s_add_u32 {sM0k}, {sG}, {L_K}
    v_and_b32 v15, 0x30, {vL16}
    {Lf0}:
    buffer_load_dword {vFlag}, v15, {WS}, {sKVF} offen sc1
    s_waitcnt vmcnt(0)
    v_cmp_eq_u32 vcc, 0, {vFlag}
    s_cbranch_vccz {Lf0}_ok
    s_add_u32 {sSpin}, {sSpin}, 0x1001
    s_cmp_lt_u32 {sSpin}, {SPIN}
    s_cbranch_scc1 {Lf0}
    s_branch L_fail
    {Lf0}_ok:
    s_mov_b32 m0, {sM0k}
    s_sub_u32 {sKV}, {sKV}, {32 * 16384}
    s_add_u32 {sKVn}, {sKV}, {32 * 16384}
    buffer_load_dwordx4 {vL16}, {WS}, {sKVn} offen sc1 lds
    buffer_load_dwordx4 {vL16}, {WS}, {sKVn} offen offset:1024 sc1 lds
    s_waitcnt vmcnt(0)
    ''')
    if timing: a('s_memrealtime s[16:17]\ns_memtime s[18:19]\ns_waitcnt lgkmcnt(0)')
    if stamps:
        for k in range(10): a(f's_mov_b32 s{92+k}, 0')
        a('s_memtime s[58:59]\ns_waitcnt lgkmcnt(0)')
    a(f'''s_and_b32 {t0}, {sH}, {1 if rot else 0}
    s_lshl_b32 {t0}, {t0}, 10
    s_add_u32 {sG}, {sG}, {t0}
    s_xor_b32 {sG2}, {sG}, 1024''')
    a(f's_cmp_eq_u32 {sW}, {9 if nopub else 3}\ns_cselect_b32 {sPub}, 0, 0x40000000\ns_mov_b32 {sWx}, 1')
    def loop(local):
        ST = '' if local else 'sc1'
        Lhop1, Lhop2, Ltick, Lgath, Lfin = lb('L_hop1'), lb('L_hop2'), lb('L_tick'), lb('L_gath'), lb('L_fin')
        a(f's_branch {Lhop1}')
        def smf(acc, afr, fr): a(f'v_smfmac_f32_16x16x64_bf16 {V(acc,4)}, {afr}, {fr(0,8)}, {vIdx}')
        Z = [Reg('v', 72 + 8 * i) for i in range(6)]
        def zl(i, tau):
            out = []
            for hf in range(2):
                r, o = res_addr(QK_SLOT[i], tau, hf)
                out.append(f'ds_read_b128 {Z[i](4*hf, 4)}, {r} offset:{o}')
            return out
        def fr(m, sg, tau):
            return home[(m, sg, tau)] or Z[QK_RES.index((m, sg))]
        vseq = [(sg, tau) for sg in range(8) for tau in range(2)]
        def vs(n):
            for _ in range(n):
                sg, tau = vseq.pop(0)
                smf(64 + 4 * tau, M(sg), home[('v', sg, tau)])
        X = lambda k: V(72 + 4 * k, 4)
        K = lambda u, k: V(88 + 8 * k + 4 * u, 4)
        a(f'.p2align 6\n{Ltick}:')
        tr(0)
        for sg in range(8): a(f'ds_read_b128 {M(sg)}, {vLm} offset:{L_M - MISC + sg * 1024}')
        zr = sum((zl(i, 1) for i in range(6)), [])
        post0 = ['v_add_f32 v52, v52, v54', 'v_add_f32 v53, v53, v55', 'v_add_f32 v48, v48, v50', 'v_add_f32 v49, v49, v51',
                 'v_cvt_pk_bf16_f32 v50, v52, v53', 'v_cvt_pk_bf16_f32 v51, v48, v49', f'ds_write_b64 {vTw}, v[50:51]',
                 f'buffer_store_dwordx2 v[50:51], {vTw}, {WS}, {sKVM} offen sc1']
        kr = [f'ds_read_b128 {K(u,k)}, {vKr} offset:{(u*4+k)*1024}' for k in range(4) for u in range(2)]
        vm = [f'buffer_load_dwordx4 v[120:123], {vL16}, {WS}, {sKVv} offen sc1',
              f'buffer_load_dwordx4 v[124:127], {vL16}, {WS}, {sKVv} offen offset:1024 sc1',
              f'buffer_load_dwordx4 {vL16}, {WS}, {sKVn} offen sc1 lds',
              f'buffer_load_dwordx4 {vL16}, {WS}, {sKVn} offen offset:1024 sc1 lds']
        mark(a, 'v126', 'v127', sS, 0) if False else None
        a(vm[0])
        a(f'buffer_store_dword v14, v15, {WS}, {sMF} offen sc1')
        fill = {1: zr[0], 2: zr[1], 3: vm[1], 4: zr[2], 5: zr[3], 6: zr[4], 7: zr[5], 8: vm[2], 9: zr[6], 10: zr[7], 11: zr[8],
                12: zr[9], 13: vm[3], 14: zr[10], 15: zr[11]}
        pre = {0: 's_waitcnt lgkmcnt(7)', 2: 's_waitcnt lgkmcnt(7)', 4: 's_waitcnt lgkmcnt(7)', 6: 's_waitcnt lgkmcnt(4)',
               16: 's_waitcnt lgkmcnt(4)', 20: 's_waitcnt lgkmcnt(0)'}
        rest = post0[:5] + kr[:1] + post0[5:6] + kr[1:2] + post0[6:7] + kr[2:3] + post0[7:8] + kr[3:]
        for n in range(17, 32): fill[n] = rest.pop(0)
        seq = [(m, sg, tau) for tau in range(2) for sg in range(8) for m in 'qk']
        for n, (m, sg, tau) in enumerate(seq):
            if n in pre: a(pre[n])
            smf(48 + 8 * tau + (4 if m == 'k' else 0), M(sg), fr(m, sg, tau))
            if n in fill: a(fill[n])
        stamp(0)
        vs(1); a(rest.pop(0)); vs(1)
        assert not rest
        a(f'''v_add_f32 v56, v56, v58
        v_add_f32 v57, v57, v59
        v_add_f32 v60, v60, v62
        v_add_f32 v61, v61, v63
        v_cvt_pk_bf16_f32 v59, v56, v57
        v_cvt_pk_bf16_f32 v58, v60, v61
        ds_write_b64 {vTw}, v[58:59] offset:512''')
        vs(1)
        a(f'buffer_store_dwordx2 v[58:59], {vTw}, {WS}, {sKVM} offen offset:512 sc1')
        vs(1)
        a(f'v_xor_b32 v14, 16, {vTr}')
        vs(vg[0] - 2)
        a('s_waitcnt lgkmcnt(0)\ns_barrier')
        stamp(1)
        for k in range(4):
            a(f'ds_read_b64_tr_b16 {V(72+4*k,2)}, {vTr} offset:{k*1024}')
            a(f'ds_read_b64_tr_b16 {V(74+4*k,2)}, v14 offset:{k*1024+256}')
            if k < vg[1]: vs(1)
        a(f'v_and_b32 v15, 0x30, {vL16}')
        for k in range(4):
            a(f's_waitcnt lgkmcnt({6 - 2*k})')
            c = lambda r: '0' if k == 0 else V(r, 4)
            a(f'v_mfma_f32_16x16x32_bf16 v[48:51], {K(0,k)}, {X(k)}, {c(48)}')
            a(f'v_mfma_f32_16x16x32_bf16 v[52:55], {K(1,k)}, {X(k)}, {c(52)}')
            if k == 0: a(f'buffer_load_dword {vFlag}, v15, {WS}, {sKVF} offen sc1')
            if k == 1: a(f'v_xor_b32 {vKr}, 8192, {vKr}')
            a(f'v_mfma_f32_16x16x32_bf16 v[56:59], {X(k)}, {X(k)}, {c(56)}')
        vs(2)
        stamp(2)
        a(f'''v_max3_f32 v14, v48, v49, v50
        v_max3_f32 v15, v51, v52, v53
        v_max3_f32 v14, v14, v54, v55
        v_max3_f32 v15, v15, v56, v57
        v_max_f32 v58, v14, v15
        v_max_f32 v59, v14, v15''')
        def gap(n):
            vs(n)
            if n < 2: a(f's_nop {1 - n}')
        gap(vg[2])
        a('''v_permlane32_swap_b32 v58, v59
        v_max_f32 v14, v58, v59
        v_max_f32 v15, v58, v59''')
        gap(vg[3])
        assert not vseq
        a(f'''v_permlane16_swap_b32 v14, v15
        v_max_f32 v14, v14, v15
        v_mul_f32 v14, {sC1}, v14''')
        for n, r in enumerate(range(48, 58, 2)):
            a(f'v_pk_fma_f32 v[{r}:{r+1}], v[{r}:{r+1}], s[50:51], v[14:15] op_sel_hi:[1,1,0] neg_lo:[0,0,1] neg_hi:[0,0,1]')
        a(f'''v_exp_f32 v56, v56
        v_exp_f32 v57, v57
        v_exp_f32 v48, v48
        v_exp_f32 v49, v49
        v_exp_f32 v50, v50
        v_cvt_pk_bf16_f32 v60, v48, v49
        v_exp_f32 v51, v51
        v_pk_add_f32 v[58:59], v[56:57], v[48:49]
        v_exp_f32 v52, v52
        v_cvt_pk_bf16_f32 v61, v50, v51
        v_exp_f32 v53, v53
        v_pk_add_f32 v[58:59], v[58:59], v[50:51]
        v_exp_f32 v54, v54
        v_cvt_pk_bf16_f32 v62, v52, v53
        v_exp_f32 v55, v55
        v_pk_add_f32 v[58:59], v[58:59], v[52:53]
        v_cvt_pk_bf16_f32 v63, v54, v55
        v_add_f32 v64, v64, v66
        s_waitcnt vmcnt(5)
        v_mfma_f32_16x16x32_bf16 v[104:107], v[120:123], v[60:63], 0
        v_add_f32 v65, v65, v67
        v_add_f32 v68, v68, v70
        v_mfma_f32_16x16x32_bf16 v[108:111], v[124:127], v[60:63], 0
        v_add_f32 v69, v69, v71
        v_cvt_pk_bf16_f32 v64, v64, v65
        v_cvt_pk_bf16_f32 v112, v56, v57
        v_cvt_pk_bf16_f32 v65, v68, v69
        v_mov_b32 v113, 0
        v_mov_b32 v114, 0
        v_cvt_pk_bf16_f32 v115, v56, v57
        v_mfma_f32_16x16x16_bf16 v[104:107], v[64:65], v[112:113], v[104:107]
        v_add_f32 v58, v58, v54
        v_add_f32 v59, v59, v55
        v_mfma_f32_16x16x16_bf16 v[108:111], v[64:65], v[114:115], v[108:111]
        v_add_f32 v14, v58, v59
        v_add_f32 v15, v58, v59
        buffer_store_dwordx2 v[64:65], {vVex}, {WS}, {sKVM} offen sc1
        ds_read_b128 v[16:19], {vLo}
        v_permlane32_swap_b32 v14, v15
        v_add_f32 v48, v14, v15
        v_add_f32 v49, v14, v15
        ds_read_b128 v[20:23], {vLo} offset:1024
        ds_read_b128 v[24:27], {vLo} offset:2048
        v_permlane16_swap_b32 v48, v49
        v_add_f32 v14, v48, v49
        v_rcp_f32 v14, v14
        ds_read_b128 v[28:31], {vLo} offset:3072''')
        for r in range(104, 112, 2):
            a(f'v_pk_mul_f32 v[{r}:{r+1}], v[{r}:{r+1}], v[14:15] op_sel_hi:[1,0]')
        a(f's_mov_b64 exec, {mO}')
        for i in range(4): a(f'v_cvt_pk_bf16_f32 v{112+i}, v{104+2*i}, v{105+2*i}')
        a(f'''ds_write_b128 {vOw}, v[112:115]
        s_mov_b64 exec, -1''')
        stamp(3)
        tr(6)
        a(f'''s_cmp_eq_u32 {sS}, {nseg-1}
        s_cbranch_scc1 {Lfin}''')
        for r in range(72, 96, 2): a(f'v_mov_b64 v[{r}:{r+1}], 0')
        a('s_waitcnt lgkmcnt(0)\ns_barrier')
        a(f'ds_read_b128 v[120:123], {vLm} offset:{L_O - MISC}')
        a(f'ds_read_b128 v[124:127], {vLm} offset:{L_O - MISC + 1024}')
        for r in range(96, 104, 2): a(f'v_mov_b64 v[{r}:{r+1}], 0')
        stamp(4)
        ofr = lambda sp, T: home[('o', sp, T)] or Reg('v', 16 + 8 * (T - 4))
        y = lambda T, r: f'v{72 + 4*T + r}'
        ad = lambda T, r: f'v_add_f32 {y(T,r)}, {y(T,r)}, {y(T,r+2)}'
        cv = lambda d, T, r: f'v_cvt_pk_bf16_f32 v{d}, {y(T,r)}, {y(T+1,r)}'
        order = [(sp, 2 * p + t) for p in range(4) for sp in range(2) for t in range(2)]
        rd = [f'ds_read_b128 {V(16+4*i,4)}, {vLo} offset:{i*1024}' for i in range(4, 8)]
        post = {0: [rd[0]], 1: [rd[1], 's_waitcnt lgkmcnt(2)'], 2: [rd[2]], 3: [rd[3]],
                4: [ad(0, 0)], 5: [ad(0, 1)], 6: [ad(1, 0)], 7: [ad(1, 1)], 8: [cv(104, 0, 0), ad(2, 0)], 9: [cv(106, 0, 1), 's_waitcnt lgkmcnt(0)'],
                10: [ad(3, 0), ad(2, 1)], 11: [ad(3, 1), cv(105, 2, 0)], 12: [cv(107, 2, 1), f'v_and_or_b32 v104, v104, -2, {sTag}'],
                13: [f'buffer_store_dwordx4 v[104:107], {vPst}, {WS}, {sP0} offen {ST}', ad(4, 0)], 14: [ad(5, 0)], 15: [ad(4, 1), ad(5, 1)]}
        a('s_waitcnt lgkmcnt(1)')
        for n, (sp, T) in enumerate(order):
            smf(72 + 4 * T, 'v[124:127]' if sp else 'v[120:123]', ofr(sp, T))
            for x in post[n]: a(x)
        a(f'''{cv(108, 4, 0)}
        {cv(110, 4, 1)}
        v_and_or_b32 v108, v108, -2, {sTag}
        {ad(6, 0)}
        {ad(6, 1)}
        s_nop 0
        {ad(7, 0)}
        {ad(7, 1)}
        {cv(109, 6, 0)}
        {cv(111, 6, 1)}
        buffer_store_dwordx4 v[108:111], {vPst}, {WS}, {sP1} offen {ST}''')
        stamp(5)
        tr(1)
        Lp1, Lfl, Lno = lb('L_poll1'), lb('L_flag'), lb('L_nored')
        a(f'{Lhop1}:')
        a(f'ds_read_b128 v[124:127], {vLm} offset:{L_S - MISC}')
        for r in range(48, 72, 2): a(f'v_mov_b64 v[{r}:{r+1}], 0')
        for i in range(6):
            for x in zl(i, 0): a(x)
        a(f'''s_add_u32 {sS}, {sS}, 1
        s_and_b32 {t0}, {sS}, {RING['A'] - 1}
        s_mul_i32 {t0}, {t0}, {32 * 8192}
        s_add_u32 {sKVM}, {t0}, {bKVM}
        s_add_u32 {sKVv}, {sKVn}, 8192
        s_add_u32 {t0}, {sS}, 1
        s_min_u32 {t0}, {t0}, {nseg - 1}
        s_and_b32 {t0}, {t0}, {RING['A'] - 1}
        s_mul_i32 {t0}, {t0}, {32 * 16384}
        s_add_u32 {sKVn}, {t0}, {sKVlast}
        s_xor_b32 {sM0k}, {sM0k}, 8192
        s_mov_b32 m0, {sM0k}
        s_add_u32 {sGa}, {sMnext}, {sG}
        s_add_u32 {sGb}, {sMnext}, {sG2}
        s_add_u32 {sNeed}, {sS}, 2
        s_min_u32 {sNeed}, {sNeed}, {nseg}
        s_cmp_lg_u32 {sWx}, 0
        s_cbranch_scc1 {Lno}''')
        if wait1: a('s_waitcnt vmcnt(0)')
        for _ in range(d1): a('s_nop 7')
        stamp(9)
        tr(2)
        a(f'{Lp1}:')
        for i in range(8):
            a(f'buffer_load_dwordx4 {V(16+4*i,4)}, {vL16}, {WS}, {sI0 if i < 4 else sI1} offen offset:{(i%4)*1024} sc1')
        a('s_waitcnt lgkmcnt(12)')
        tt = ((0xF0 ^ 0xAA) & (0xCC ^ 0xAA)) & 0xFF
        t2 = (0xF0 & (0xCC ^ 0xAA)) & 0xFF
        for i in range(8):
            a(f's_waitcnt vmcnt({7-i})')
            a(f"v_mfma_f32_16x16x32_bf16 v[120:123], v[124:127], {V(16+4*i,4)}, {'0' if i == 0 else 'v[120:123]'}")
            if i == 1: a(f'v_bitop3_b32 v14, v16, v20, {sNTag} bitop3:{tt}')
            if i > 1: a(f'v_bitop3_b32 v14, v14, v{16+4*i}, {sNTag} bitop3:{t2}')
        a(f'''v_and_b32 v14, 1, v14
        v_cmp_eq_u32 vcc, 0, v14
        v_mov_b32 v124, -1
        v_mov_b32 v125, -1
        s_mov_b64 exec, {mLo}
        s_nop 1
        v_cvt_pk_bf16_f32 v14, v120, v121
        v_cvt_pk_bf16_f32 v15, v122, v123
        v_min_u32 v14, -2, v14
        s_cbranch_vccz {Lp1}_ok
        s_mov_b64 exec, -1
        ds_read_b128 v[124:127], {vLm} offset:{L_S - MISC}
        s_add_u32 {sSpin}, {sSpin}, 0x1001
        s_cmp_lt_u32 {sSpin}, {SPIN}
        s_waitcnt lgkmcnt(0)
        s_cbranch_scc1 {Lp1}
        s_branch L_fail
        {Lno}:
        s_waitcnt vmcnt(0)
        s_branch {Lhop2}
        {Lp1}_ok:''')
        stamp(2, True)
        tr(3)
        a(f'''buffer_store_dwordx2 v[14:15], {vMst}, {WS}, {sMnext} offen {ST}
    ''')
        a(f'buffer_store_dwordx2 v[124:125], {vMst}, {WS}, {sMarm} offen {ST}')
        a(f'''s_mov_b64 exec, -1
        {Lhop2}:
        s_barrier''')
        stamp(6)
        tr(4)
        for _ in range(d2): a('s_nop 7')
        stamp(0, True)
        a(f'{Lgath}:')
        a(f'buffer_load_dwordx4 v[16:19], {vL16}, {WS}, {sGa} offen sc1')
        a(f'buffer_load_dwordx4 v[20:23], {vL16}, {WS}, {sGb} offen sc1')
        a(f'''v_add_u32 v14, {sG}, {vLm}
        v_add_u32 v24, {sG2}, {vLm}
        s_waitcnt vmcnt(1)
        ds_write_b128 v14, v[16:19] offset:{L_M - MISC}
        v_max_u32 v15, v16, v18
        s_waitcnt vmcnt(0)
        ds_write_b128 v24, v[20:23] offset:{L_M - MISC}
        v_max3_u32 v15, v15, v20, v22
        v_cmp_eq_u32 vcc, -1, v15
        s_add_u32 {sSpin}, {sSpin}, 0x1000
        s_cmp_lt_u32 {sSpin}, 0x7fff0000
        s_cbranch_vccz {Lgath}_ok
        s_cbranch_scc1 {Lgath}
        s_branch L_fail
        {Lgath}_ok:''')
        stamp(1, True)
        tr(5)
        a(f'''{Lfl}:
        v_cmp_gt_u32 vcc, {sNeed}, {vFlag}
        s_cbranch_vccz {Lfl}_ok
        v_and_b32 v15, 0x30, {vL16}
        buffer_load_dword {vFlag}, v15, {WS}, {sKVF} offen sc1
        s_add_u32 {sSpin}, {sSpin}, 0x1001
        s_cmp_lt_u32 {sSpin}, {SPIN}
        s_waitcnt vmcnt(0)
        s_cbranch_scc1 {Lfl}
        s_branch L_fail
        {Lfl}_ok:
        s_mov_b32 {t0}, {sMcur}
        s_mov_b32 {sMcur}, {sMnext}
        s_mov_b32 {sMnext}, {sMarm}
        s_mov_b32 {sMarm}, {t0}
        s_and_b32 {sNTag}, {sS}, 1
        s_xor_b32 {sTag}, {sNTag}, 1
        s_mov_b32 {sWx}, {sW}''')
        if trace:
            a('s_waitcnt lgkmcnt(0)')
            for k in range(7): a(f'v_writelane_b32 v14, s{TR[k]}, {k}')
            a(f'''v_writelane_b32 v14, {sSpin}, 7
            s_lshl_b32 {t0}, {sL}, 5
            s_add_u32 {t0}, {t0}, {sH}
            s_lshl_b32 {t0}, {t0}, 2
            s_add_u32 {t0}, {t0}, {sW}
            s_lshl_b32 {t0}, {t0}, 6
            s_add_u32 {t0}, {t0}, {sS}
            s_lshl_b32 {t0}, {t0}, 5
            s_add_u32 {t0}, {t0}, {DBG_OFF + 0x100000}
            v_lshrrev_b32 v15, 2, {vL16}
            s_mov_b64 exec, 0xff
            buffer_store_dword v14, v15, {WS}, {t0} offen
            s_mov_b64 exec, -1''')
        if TRACE[0]:
            a('v_mov_b32 v15, 0'); mark(a, 'v14', 'v15', sS, 0)
        a(f'''v_mov_b32 v14, {sS}
        v_mov_b32 v15, {sPub}''')
        stamp(7)
        a(f'''s_waitcnt lgkmcnt(0)
        s_barrier''')
        stamp(8)
        a(f'''s_branch {Ltick}
        {Lfin}:
        s_waitcnt vmcnt(0)
        s_barrier
        v_mov_b32 v15, 0
        v_mov_b32 v14, {nseg}
        s_mov_b64 exec, 1
        buffer_store_dword v14, v15, {WS}, {sMF} offen sc1
        s_mov_b64 exec, -1''')
    both(a, local, loop)
```

```python
from asmlib import *
from lanefn import emit_lanefn
F_XN, F_X1, F_PW, F_H, F_PD = 0x0000, 0x0400, 0x0600, 0x0800, 0x0A00
F_O   = 0x0C00
F_X1B = 0x1000
KVF_OFF = 0x2000
MF_OFF  = 0x8000
CH_OFF  = 0x100000
DBG_OFF = 0x200000
KV_OFF  = 0x0800000
Q_OFF   = 0x4800000
KVM_OFF = 0x6800000
O_OFF   = 0x8800000
PW_OFF  = 0xA800000
PD_OFF  = 0xC800000
H_OFF   = 0xD800000
XN_OFF  = 0xE800000
XR_OFF  = 0xEC00000
X1_OFF  = 0xF000000
X1N_OFF = 0xF400000
SPIN = 0x7fff0000
WS = 's[8:11]'; DBG = 's[12:15]'; SA = 's[16:19]'; SB = 's[20:23]'
P = lambda i: 64 + 2 * i
sW, sXCC, sRANK = 's24', 's25', 's26'

def build_srd(a, q, ptr, nbytes):
    a(f'''s_mov_b32 s{q}, s{P(ptr)}
    s_mov_b32 s{q+1}, s{P(ptr)+1}
    s_mov_b32 s{q+2}, {nbytes}
    s_mov_b32 s{q+3}, 0x00020000''')

def prologue(a, nwg=256, fake=False):
    a(f'''
    s_cmp_ge_u32 s2, {nwg}
    s_cbranch_scc1 L_end
    s_load_dwordx16 s[64:79], s[0:1], 0
    s_load_dwordx8 s[80:87], s[0:1], 64
    s_load_dwordx4 s[88:91], s[0:1], 96
    s_getreg_b32 {sXCC}, hwreg(HW_REG_XCC_ID, 0, 4)
    v_lshrrev_b32 v1, 6, v0
    v_and_b32 v0, 63, v0
    s_nop 0
    v_readfirstlane_b32 {sW}, v1
    s_waitcnt lgkmcnt(0)
    ''')
    build_srd(a, 8, 13, 0x10000000)
    build_srd(a, 12, 12, 256)
    if fake:
        a(f's_lshr_b32 {sXCC}, s2, 5\ns_cmp_lt_u32 s2, 40\ns_cselect_b32 {sXCC}, 5, {sXCC}')
    a(f'''
    s_and_b32 {sXCC}, {sXCC}, 7
    s_cmp_lg_u32 {sW}, 0
    s_cbranch_scc1 L_norank
    v_mov_b32 v3, 1
    s_lshl_b32 s27, {sXCC}, 5
    v_mov_b32 v4, s27
    v_mov_b32 v5, 0
    s_mov_b64 exec, 1
    buffer_atomic_add v3, v4, {DBG}, 0 offen sc0
    s_waitcnt vmcnt(0)
    ds_write_b32 v5, v3
    s_waitcnt lgkmcnt(0)
    s_mov_b64 exec, -1
    L_norank:
    s_barrier
    v_mov_b32 v5, 0
    ds_read_b32 v3, v5
    s_waitcnt lgkmcnt(0)
    v_readfirstlane_b32 {sRANK}, v3
    s_barrier
    ''')

def rng(kind, b, n):
    return f'{kind}[{b}:{b+n-1}]' if n > 1 else f'{kind}{b}'
def V(b, n=1): return rng('v', b, n)
def A(b, n=1): return rng('a', b, n)
class Reg:
    def __init__(s, kind, b): s.kind, s.b = kind, b
    def __call__(s, o=0, n=1): return rng(s.kind, s.b + o, n)

sL, sIdx, sSpin = 's27', 's26', 's52'
def poll(a, vdst, vaddr, soff, sneed, lab, sleep=0, first_issued=False):
    if first_issued: a(f'v_cmp_gt_u32 vcc, {sneed}, {vdst}\ns_cbranch_vccz {lab}_ok')
    a(f'{lab}:')
    if sleep: a(f's_sleep {sleep}')
    a(f"""buffer_load_dword {vdst}, {vaddr}, {WS}, {soff} offen sc1
    s_waitcnt vmcnt(0)
    v_cmp_gt_u32 vcc, {sneed}, {vdst}
    s_add_u32 {sSpin}, {sSpin}, 0x1000
    s_cmp_lt_u32 {sSpin}, {SPIN}
    s_cbranch_vccz {lab}_ok
    s_cbranch_scc1 {lab}
    s_branch L_fail
    {lab}_ok:""")
def publish(a, vtmp, vzero, sval, soff, ST, kind=None):
    a(f"""v_mov_b32 {vtmp}, {sval}
    s_mov_b64 exec, 1
    buffer_store_dword {vtmp}, {vzero}, {WS}, {soff} offen {ST}
    s_mov_b64 exec, -1""")
    if kind is not None: mark(a, vtmp, vzero, sval, kind)

TRACE = [False]
sSlot, sMode = 's4', 's5'
def mark(a, vtmp, vzero, sval, kind):
    if not TRACE[0]: return
    a(f"""s_memrealtime s[100:101]
    s_memtime s[96:97]
    s_lshl_b32 s98, {sSlot}, 2
    s_add_u32 s98, s98, {sW}
    s_lshl_b32 s98, s98, 1
    s_add_u32 s98, s98, {kind}
    s_lshl_b32 s98, s98, 7
    s_add_u32 s98, s98, {sval}
    s_lshl_b32 s98, s98, 2
    s_add_u32 s98, s98, {DBG_OFF}
    s_waitcnt lgkmcnt(0)
    v_mov_b32 {vtmp}, s100
    s_mov_b64 exec, 1
    buffer_store_dword {vtmp}, {vzero}, {WS}, s98 offen
    s_add_u32 s98, s98, 0x200000
    v_mov_b32 {vtmp}, s96
    buffer_store_dword {vtmp}, {vzero}, {WS}, s98 offen
    s_mov_b64 exec, -1""")
def both(a, local, fn):
    if local is not None: return fn(local)
    L = a.label('L_nonlocal')
    a(f's_cmp_lg_u32 {sMode}, 0\ns_cbranch_scc1 {L}')
    fn(True)
    a(f's_branch L_done\n{L}:')
    fn(False)

RING = dict(A=8, B=8, X=16)
def ringptr(a, cnt, R, items, tmp, sub=0):
    a(f's_sub_u32 {tmp}, {cnt}, {sub}\ns_and_b32 {tmp}, {tmp}, {R - 1}' if sub else f's_and_b32 {tmp}, {cnt}, {R - 1}')
    for dst, base, stride in items:
        a(f's_mul_i32 {dst}, {tmp}, {stride}\ns_add_u32 {dst}, {dst}, {base}')

TRACE2 = [False]
class Tracer:
    def __init__(s, a, regs, v0, v1): s.a, s.r, s.v0, s.v1 = a, regs, v0, v1
    def __call__(s, i):
        if TRACE2[0]: s.a(f's_memtime s[{s.r[i]}:{s.r[i]+1}]')
    def flush(s, item):
        if not TRACE2[0]: return
        a = s.a
        a('s_waitcnt lgkmcnt(0)')
        for i, r in enumerate(s.r): a(f'v_writelane_b32 {s.v0}, s{r}, {i}')
        a(f"""s_lshl_b32 s99, {sSlot}, 2
        s_add_u32 s99, s99, {sW}
        s_lshl_b32 s99, s99, 6
        s_add_u32 s99, s99, {item}
        s_lshl_b32 s99, s99, 5
        s_add_u32 s99, s99, {DBG_OFF + 0x400000 - 32}
        v_mbcnt_lo_u32_b32 {s.v1}, -1, 0
        v_lshlrev_b32 {s.v1}, 2, {s.v1}
        s_mov_b64 exec, 0xff
        buffer_store_dword {s.v0}, {s.v1}, {WS}, s99 offen
        s_mov_b64 exec, -1""")

OPT = dict(wc='nt', wg='nt', gate_w=True, warm=True, nt_att='', nt_r='', nt_x='')
def prewarm(a, R, sbase, stride, vaddr, offs, stmp, vdst=16):
    if not OPT['warm']: return
    L = a.label('L_warm')
    a(f's_mov_b32 {stmp}, {sbase}\ns_mov_b32 s99, {R}\n{L}:')
    for i, o in enumerate(offs):
        if o >= 4096: a(f's_add_u32 s98, {stmp}, {o & ~4095}')
        a(f"buffer_load_dwordx4 v[{vdst + 4 * i}:{vdst + 4 * i + 3}], {vaddr}, {WS}, {'s98' if o >= 4096 else stmp} offen offset:{o & 4095} sc1")
    a(f's_add_u32 {stmp}, {stmp}, {stride}\ns_sub_u32 s99, s99, 1\ns_cmp_lg_u32 s99, 0\ns_cbranch_scc1 {L}\ns_waitcnt vmcnt(0)')
```

```python
import math, struct
from common import *
def f32bits(x): return struct.unpack('<I', struct.pack('<f', x))[0]

def kmap_x(kap, hi, jq): return 16 * kap + 8 * jq + 4 * hi
def kmap_o(kap, hi, jq): return 128 * (kap >> 3) + 32 * ((kap >> 1) & 3) + 16 * jq + 8 * (kap & 1) + 4 * hi

CFG = {
    'qkv': dict(nk=32, chunks=[8, 8, 8, 8], up=6, NT=50, FL=28, ring=6, kmap=kmap_x),
    'w':   dict(nk=64, chunks=[8, 8, 16, 16, 16], up=8, NT=46, FL=30, PUB=29, ring=4, kmap=kmap_o),
    'u':   dict(nk=32, chunks=[8, 8, 8, 8], up=6, NT=42, FL=24, ring=4, kmap=kmap_x),
    'd':   dict(nk=56, chunks=[8, 8, 8, 16, 16], up=6, NT=38, FL=24, PUB=23, ring=4, kmap=kmap_x),
}

def emit_gemm(a, kind, local=True, nseg=64, hook=None, nopref=False, **over):
    cfg = dict(CFG[kind]); cfg.update(over); ring = cfg['ring']; nk, kmap = cfg['nk'], cfg['kmap']
    lb = a.label
    t0, t1 = 's42', 's43'
    sI, sIn, sOut, sOut2, sOut3, sFin, sFout, sBuf, sNeed, sPref, sWofs, sM0 = ['s%d' % r for r in range(28, 40)]
    vL16, vF, vZ, vFl, vRd, vS0, vS1, vT = ['v%d' % r for r in range(8)]
    lane, tmp = 'v112', 'v113'
    a(f'v_mov_b32 {lane}, v0\nv_lshlrev_b32 {vL16}, 4, {lane}\nv_mov_b32 {vZ}, 0\ns_mov_b32 {sSpin}, 0')
    passes = {'qkv': ['k', 'v', 'q'], 'w': ['o'], 'u': ['a', 'b'], 'd': ['d']}[kind]
    pool = [Reg('a', 4 * i) for i in range(64)] + [Reg('v', 128 + 4 * i) for i in range(32)]
    home = {(p, k): pool.pop(0) for p in passes for k in range(nk)}
    if kind == 'qkv':
        mats = [(3, 8192, 4 << 20), (4, 8192, 4 << 20), (2, 8192, 4 << 20)]
        a(f'''s_lshl_b32 {sWofs}, {sIdx}, 8
        s_lshl_b32 {t0}, {sL}, 21
        s_add_u32 {sIn}, {t0}, {XN_OFF}
        s_lshl_b32 {t0}, {sL}, 11
        s_add_u32 {t0}, {t0}, {sIdx}
        s_lshl_b32 {sOut}, {t0}, 14
        s_add_u32 {sOut}, {sOut}, {KV_OFF}
        s_lshl_b32 {sOut3}, {t0}, 13
        s_add_u32 {sOut3}, {sOut3}, {Q_OFF}
        s_lshl_b32 {t0}, {sW}, 11
        s_add_u32 {sOut2}, {sOut}, {t0}
        s_add_u32 {sOut2}, {sOut2}, 8192
        s_lshl_b32 {t0}, {sW}, 10
        s_add_u32 {sOut}, {sOut}, {t0}
        s_add_u32 {sOut3}, {sOut3}, {t0}
        s_lshl_b32 {sFin}, {sL}, 8
        s_add_u32 {sFin}, {sFin}, {F_XN}
        s_lshl_b32 {t0}, {sL}, 5
        s_add_u32 {t0}, {t0}, {sIdx}
        s_lshl_b32 {t0}, {t0}, 7
        s_lshl_b32 {t1}, {sW}, 4
        s_add_u32 {t0}, {t0}, {t1}
        s_add_u32 {sFout}, {t0}, {KVF_OFF}
        v_and_b32 {vF}, 15, {lane}
        v_lshlrev_b32 {vF}, 2, {vF}''')
        emit_lanefn(a, vS0, lane, lambda l: ((l >> 4) & 1) * 4096 + (l >> 5) * 256 + (l & 15) * 16, tmp)
        emit_lanefn(a, vS1, lane, lambda l: ((l >> 4) & 1) * 1024 + (l >> 5) * 256 + (l & 15) * 16, tmp)
        a(f'''s_lshl_b32 s63, {sL}, 2
        s_lshr_b32 {t0}, {sIdx}, 3
        s_add_u32 s63, s63, {t0}
        s_lshl_b32 s63, s63, 7
        s_and_b32 {t0}, {sIdx}, 7
        s_lshl_b32 {t0}, {t0}, 3
        s_add_u32 s63, s63, {t0}
        s_add_u32 s63, s63, {F_O}
        v_and_b32 v8, 1, {lane}
        v_lshlrev_b32 v8, 2, v8''')
        instride, outstride, STO = 32768, None, 'q'
        nchunk = [(m, c) for m in range(3) for c in range(8)]
    elif kind in ('w', 'd'):
        rows = nk * 16
        mats = [(5 if kind == 'w' else 10, 1024, (4 << 20) if kind == 'w' else 1792 * 1024)]
        inoff, instride, kgin = (O_OFF, 262144, 65536) if kind == 'w' else (H_OFF, 131072, 57344)
        outoff, outstride = (PW_OFF, 131072) if kind == 'w' else (PD_OFF, 65536)
        a(f'''s_lshr_b32 {t0}, {sIdx}, 2
        s_and_b32 {t1}, {sIdx}, 3
        s_mul_i32 {sWofs}, {t0}, {rows * 1024}
        s_lshl_b32 {sOut}, {t1}, 8
        s_add_u32 {sWofs}, {sWofs}, {sOut}
        s_mul_i32 {sIn}, {sL}, {64 * instride}
        s_mul_i32 {sOut}, {t0}, {kgin}
        s_add_u32 {sIn}, {sIn}, {sOut}
        s_add_u32 {sIn}, {sIn}, {inoff}
        s_mul_i32 {sOut}, {sL}, {64 * outstride}
        s_add_u32 {sOut}, {sOut}, {outoff}
        s_lshl_b32 {sFin}, {t0}, 15
        s_add_u32 {sOut}, {sOut}, {sFin}
        s_lshl_b32 {sFin}, {t1}, 13
        s_add_u32 {sOut}, {sOut}, {sFin}
        s_lshl_b32 {sFin}, {sW}, 11
        s_add_u32 {sOut}, {sOut}, {sFin}
        s_lshl_b32 {sFout}, {sIdx}, 2
        s_add_u32 {sFout}, {sFout}, {sW}
        s_lshl_b32 {sFout}, {sFout}, 2
        s_lshl_b32 {t1}, {sL}, 8
        s_add_u32 {sFout}, {sFout}, {t1}
        s_add_u32 {sFout}, {sFout}, {F_PW if kind == 'w' else F_PD}''')
        if kind == 'w':
            a(f'''s_lshl_b32 {sFin}, {sL}, 2
            s_add_u32 {sFin}, {sFin}, {t0}
            s_lshl_b32 {sFin}, {sFin}, 7
            s_add_u32 {sFin}, {sFin}, {F_O}
            v_and_b32 {vF}, 15, {lane}
            v_lshlrev_b32 {vF}, 2, {vF}''')
            STO = 'x'
        else:
            a(f'''s_mul_i32 {sFin}, {t0}, 112
            s_add_u32 {sFin}, {sFin}, {t1}
            s_add_u32 {sFin}, {sFin}, {F_H}
            v_min_u32 {vF}, 27, {lane}
            v_lshlrev_b32 {vF}, 2, {vF}''')
            STO = 'l'
        nchunk = [(0, c) for c in range(rows // 64)]
    else:
        mats = [(8, 3584, 512 * 3584), (9, 3584, 512 * 3584)]
        instride, outstride, STO = 32768, 131072, 'l'
        a(f'''s_lshl_b32 {sWofs}, {sIdx}, 8
        s_lshl_b32 {t0}, {sL}, 21
        s_add_u32 {sIn}, {t0}, {X1N_OFF}
        s_lshl_b32 {sOut}, {sL}, 23
        s_add_u32 {sOut}, {sOut}, {H_OFF}
        s_lshl_b32 {t0}, {sIdx}, 13
        s_add_u32 {sOut}, {sOut}, {t0}
        s_lshl_b32 {t0}, {sW}, 11
        s_add_u32 {sOut}, {sOut}, {t0}
        s_lshl_b32 {t1}, {sL}, 8
        s_add_u32 {sFin}, {t1}, {F_X1}
        s_lshl_b32 {sFout}, {sIdx}, 2
        s_add_u32 {sFout}, {sFout}, {sW}
        s_lshl_b32 {sFout}, {sFout}, 2
        s_add_u32 {sFout}, {sFout}, {t1}
        s_add_u32 {sFout}, {sFout}, {F_H}
        v_and_b32 {vF}, 15, {lane}
        v_lshlrev_b32 {vF}, 2, {vF}''')
        nchunk = [(m, c) for c in range(8) for m in range(2)]
    Lna = lb('L_na')
    a(f'''s_cmp_lg_u32 {sW}, 0
    s_cbranch_scc1 {Lna}
    v_lshlrev_b32 {vT}, {4 if kind == 'qkv' else 2}, {lane}
    s_mov_b64 exec, 15
    buffer_store_dword {vZ}, {vT}, {WS}, {sFout} offen sc1''')
    if kind == 'qkv': a(f's_add_u32 {t0}, {sFout}, 0x2000\nbuffer_store_dword {vZ}, {vT}, {WS}, {t0} offen sc1')
    a('s_mov_b64 exec, -1\ns_waitcnt vmcnt(0)')
    if hook: hook('arrive0')
    a(f'{Lna}:')
    vD = ['v114', 'v115']; vR = 'v116'; vA = ['v117', 'v118']
    srdq = [16, 20, 56]
    for m, (ptr, stride, nb) in enumerate(mats): build_srd(a, srdq[m], ptr, nb)
    stride = mats[0][1]
    emit_lanefn(a, vD[0], lane, lambda l: ((l & 15) ^ (4 * (l >> 4))) * 16, tmp)
    a(f'''v_lshrrev_b32 {tmp}, 4, {lane}
    v_mul_u32_u24 {tmp}, {stride}, {tmp}
    v_xor_b32 {vD[1]}, 32, {vD[0]}
    v_add_u32 {vD[0]}, {tmp}, {vD[0]}
    v_add_u32 {vD[1]}, {tmp}, {vD[1]}
    s_mul_i32 {t0}, {sW}, {16 * stride}
    s_add_u32 {sWofs}, {sWofs}, {t0}
    s_lshl_b32 {sM0}, {sW}, 12''')
    if kind == 'u':
        f = lambda l: (4 * (l >> 5) + ((l >> 2) & 3)) * 256 + ((l >> 4) & 1) * 16384 + ((((l & 3) >> 1) ^ (4 * ((l >> 2) & 3)) ^ (2 * ((l >> 4) & 1))) * 16) + (l & 1) * 8
    else:
        f = lambda l: (4 * (l >> 5) + ((l >> 2) & 3)) * 256 + (((2 * ((l >> 4) & 1) + ((l & 3) >> 1)) ^ (4 * ((l >> 2) & 3))) * 16) + (l & 1) * 8
    emit_lanefn(a, vR, lane, f, tmp)
    a(f's_lshl_b32 {t0}, {sW}, 6\nv_xor_b32 {vR}, {t0}, {vR}')
    NC = len(nchunk)
    def issue(n):
        m, c = nchunk[n]; q = srdq[m]
        for i in range(4):
            a(f's_add_u32 m0, {sM0}, {(n % 10) * 16384 + i * 1024}')
            a(f's_add_u32 {t0}, {sWofs}, {(c * 64 + 4 * i) * stride}')
            a(f"buffer_load_dwordx4 {vD[1] if (kind == 'u' and m) else vD[0]}, s[{q}:{q+3}], {t0} offen {OPT['wg']} lds")
    readiter = {n: (n | 1 if kind == 'u' else n) for n in range(NC)}
    issue_at = {}
    for n in range(10, NC): issue_at.setdefault(readiter[n - 10] + 1, []).append(n)
    if hook: hook('gate_all' if (kind != 'qkv' and OPT['gate_w']) else 'gate')
    for n in range(10): issue(n)
    issued = 10
    for n in range(NC):
        a(f's_waitcnt vmcnt({4 * (issued - n - 1)}) lgkmcnt(0)\ns_barrier')
        for c in issue_at.get(n, []):
            issue(c); issued += 1
        m, c = nchunk[n]
        if kind == 'u' and m == 0: continue
        base = ((n - 1) % 10 if kind == 'u' else n % 10) * 16384
        a(f'v_add_u32 {vA[0]}, {base}, {vR}')
        if kind == 'u': a(f'v_xor_b32 {vA[1]}, 32, {vA[0]}')
        for kap in range(nk):
            if kmap(kap, 0, 0) // 64 != c: continue
            for pi, p in enumerate(passes):
                if kind == 'qkv' and pi != m: continue
                for jq in range(2):
                    a(f'ds_read_b64_tr_b16 {home[(p, kap)](2*jq, 2)}, {vA[pi if kind == "u" else 0]} offset:{(kmap(kap, 0, jq) % 64) * 256}')
    a('s_waitcnt lgkmcnt(0)\ns_barrier')
    if kind in 'ud': prewarm(a, RING['B'], sOut, outstride, vL16, [0, 1024], t0)
    if hook: hook('wait')
    SCOPE = STO
    def loop(local):
        STO = '' if (local and SCOPE in 'lq') else 'sc1'
        bufsz = nk * 1024
        Litem, Ldma, Lfin = lb('L_item'), lb('L_dma'), lb('L_fin')
        bI2, bI4, bO1, bO2, bO3, sFb, sNb = 's48', 's49', 's60', 's61', 's62', 's63', 's53'
        sFq = sPref
        Rin, Rout = (RING['X'], RING['A']) if kind == 'qkv' else (RING['B'], RING['B'])
        sB2, sB4, sI2, sI4 = 's44', 's45', 's46', 's47'
        a(f'''s_mov_b32 {sI}, 0
        s_mov_b32 {sNeed}, 1
        s_mov_b32 {sBuf}, 0
        s_add_u32 {sFq}, {sFout}, 0x2000
        s_lshl_b32 {sB2}, {sW}, 11
        s_lshl_b32 {sB4}, {sW}, 12
        s_add_u32 {sI2}, {sIn}, {sB2}
        s_add_u32 {sI4}, {sIn}, {sB4}
        s_mov_b32 {bI2}, {sI2}
        s_mov_b32 {bI4}, {sI4}
        s_mov_b32 {bO1}, {sOut}
        s_mov_b32 {bO2}, {sOut2}
        s_mov_b32 {bO3}, {sOut3}
        v_mov_b32 {vRd}, {vL16}''')
        def dma_ops():
            out = []; k0 = 0
            for ci, per in enumerate(cfg['chunks']):
                n = per // 4
                su = [f's_add_u32 m0, {sB2 if n == 2 else sB4}, {k0 * 1024}', f's_add_u32 {t0}, {sI2 if n == 2 else sI4}, {k0 * 1024}']
                for i in range(n):
                    out.append((su if i == 0 else [], f'buffer_load_dwordx4 {vL16}, {WS}, {t0} offen offset:{i*1024} sc1 {OPT["nt_x"] if kind == "qkv" else ""} lds', ci))
                k0 += per
            return out
        def advance():
            return [f's_and_b32 {t1}, {sNeed}, {Rin - 1}', f's_mul_i32 {t1}, {t1}, {instride}', f's_add_u32 {sI2}, {t1}, {bI2}', f's_add_u32 {sI4}, {t1}, {bI4}',
                    f's_add_u32 {sNeed}, {sNeed}, 1', f's_sub_u32 {sB2}, {sB2}, {sBuf}', f's_sub_u32 {sB4}, {sB4}, {sBuf}', f's_sub_u32 {sBuf}, {bufsz}, {sBuf}',
                    f's_add_u32 {sB2}, {sB2}, {sBuf}', f's_add_u32 {sB4}, {sB4}, {sBuf}']
        steps = [(pi, k) for pi in range(len(passes)) for k in range(nk)]
        N = len(steps); LA = ring - 1
        NT, FL, carry = cfg['NT'], cfg['FL'], kind in ('qkv', 'u')
        assert N % ring == 0
        RG = lambda n: V(64 + 4 * (n % ring), 4)
        ACC = lambda pi: 16 + 16 * pi
        cstart = {sum(cfg['chunks'][:c]): c for c in range(len(cfg['chunks']))}
        def epi(pi):
            r = lambda i: f'v{ACC(pi) + i}'
            p = passes[pi]; out = []; E = 88
            if p in 'kqod':
                va, so, o, fl = (vS0, sOut if p == 'k' else sOut3, 512, 'sc1' if p == 'k' else STO) if p in 'kq' else (vL16, sOut, 1024, STO)
                for pc in range(2):
                    out += [f'v_cvt_pk_bf16_f32 v{E+4*pc+i}, {r(8*pc+2*i)}, {r(8*pc+2*i+1)}' for i in range(4)]
                    out += [(f'buffer_store_dwordx4 {V(E+4*pc,4)}, {va}, {WS}, {so} offen offset:{pc*o} {fl}', 'st' + p)]
            elif p == 'v':
                for pc in range(2):
                    out += [f'v_cvt_pk_bf16_f32 v{E+4*pc+i}, {r(4*pc+8*(i>>1)+2*(i&1))}, {r(4*pc+8*(i>>1)+2*(i&1)+1)}' for i in range(4)]
                    out += [(f'buffer_store_dwordx4 {V(E+4*pc,4)}, {vS1}, {WS}, {sOut2} offen offset:{pc*512} sc1', 'stv')]
            else:
                T = lambda i: f'v{96+i}'
                for i in range(8): out += [f'v_mul_f32 {T(i)}, s40, {r(i)}']
                for i in range(8): out += [f'v_exp_f32 {T(i)}, {T(i)}']
                for i in range(8): out += [f'v_add_f32 {T(i)}, 1.0, {T(i)}']
                for i in range(8): out += [f'v_rcp_f32 {T(i)}, {T(i)}']
                for i in range(8): out += [f'v_mul_f32 {r(i)}, {r(i)}, {r(8+i)}']
                for i in range(8): out += [f'v_mul_f32 {T(i)}, {T(i)}, {r(i)}']
                out += [f'v_cvt_pk_bf16_f32 v{E+4*pi+i}, {T(2*i)}, {T(2*i+1)}' for i in range(4)]
                out += [(f'buffer_store_dwordx4 {V(E+4*pi,4)}, {vL16}, {WS}, {sOut} offen offset:{pi*1024} {STO}', 'st' + p)]
            return out
        if kind == 'u': a(f's_mov_b32 s40, {f32bits(-math.log2(math.e))}')
        tr = Tracer(a, [92, 94, 16, 18, 20, 50, 56, 58], 'v110', 'v111')
        trace = {'qkv': [0, 32, 64, 80], 'w': [0, 16, 32, 48], 'u': [0, 16, 32, 48], 'd': [0, 16, 32, 48]}[kind]
        vq = []
        st = dict(side=[], dq=[])
        def vm(ins, tag): a(ins); vq.append(tag)
        def wait(tag):
            if tag not in vq: return
            last = len(vq) - 1 - vq[::-1].index(tag)
            a(f's_waitcnt vmcnt({len(vq) - 1 - last})'); del vq[:last + 1]
        def emit(x):
            if callable(x): x()
            elif isinstance(x, tuple): vm(*x)
            else: a(x)
        def pub(off):
            fl = 'sc1' if (kind == 'qkv' and not off) else STO
            vm(f'buffer_store_dword {vT}, {vZ}, {WS}, {sFq if off else sFout} offen {fl}', 'pub')
            if not off and TRACE[0]: mark(a, 'v110', vZ, sI, 0); vq.extend(['x', 'x'])
        def put_dma():
            su, ins, ci = st['dq'].pop(0)
            for x in su: a(x)
            vm(ins, f'dma{ci}')
        def rd(n, nxt=False):
            if n >= N and not nxt: return
            m = n % N
            if n == N: a(f'v_add_u32 {vRd}, {sBuf}, {vL16}')
            if m in cstart:
                assert (nxt and n < N) or not any(o[2] <= cstart[m] for o in st['dq'])
                wait(f'dma{cstart[m]}'); a('s_barrier')
            a(f'ds_read_b128 {RG(n)}, {vRd} offset:{steps[m][1] * 1024}')
        def run(n0, n1, at={}, nxt=False):
            for n in range(n0, n1):
                if n in trace: tr(1 + trace.index(n))
                pi, k = steps[n]
                rd(n + LA, nxt)
                a(f's_waitcnt lgkmcnt({LA if nxt else min(LA, N - 1 - n)})')
                c = '0' if k == 0 else V(ACC(pi), 16)
                wf = home[(passes[pi], k)](0, 4)
                if passes[pi] == 'v': a(f'v_mfma_f32_32x32x16_bf16 {V(ACC(pi),16)}, {RG(n)}, {wf}, {c}')
                else: a(f'v_mfma_f32_32x32x16_bf16 {V(ACC(pi),16)}, {wf}, {RG(n)}, {c}')
                if k == 1 and pi > 0: st['side'] = st['side'] + epi(pi - 1)
                for x in at.get(n, []): emit(x)
                for _ in range(3 if kind == 'u' else 2):
                    if st['side']: emit(st['side'].pop(0))
                if st['dq'] and n % 2 == 0: put_dma()
        outp = {'qkv': [(sOut, bO1, 32 * 16384), (sOut2, bO2, 32 * 16384)]}.get(kind, [(sOut, bO1, outstride)])
        outq = [(sOut3, bO3, 32 * 8192)]
        adv = advance()
        common_at = {FL: [(f'buffer_load_dword {vFl}, {vF}, {WS}, {sFin} offen sc1', 'fl')],
                     NT - 5: adv[:4], NT - 4: adv[4:8], NT - 3: adv[8:]}
        if kind == 'qkv':
            common_at[FL].insert(0, (f'buffer_load_dword v9, v8, {WS}, {sFb} offen sc1', 'fl'))
            common_at[FL - 2] = [f'v_mov_b32 {vT}, {sI}', f's_sub_u32 {sNb}, {sI}, {Rout - 2}', f's_max_i32 {sNb}, {sNb}, 0']
            common_at[FL - 1] = [lambda: (wait('stq'), pub(1))]
        def check():
            wait('fl')
            a(f'v_cmp_gt_u32 vcc, {sNeed}, {vFl}')
            if kind == 'qkv': a(f'v_cmp_gt_u32 s[54:55], {sNb}, v9')
        Lmid, Lt0 = lb('L_mid'), lb('L_tail0')
        a(f'{Litem}:')
        poll(a, vFl, vF, sFin, sNeed, lb('L_poll'))
        a(f'{Ldma}:')
        tr(7)
        st['dq'] = dma_ops()
        for _ in range(cfg['up']): put_dma()
        for n in range(LA): rd(n)
        run(0, NT - 1, common_at)
        assert not st['dq']
        check()
        a(f'{Lmid}:')
        side_mid, vq_mid = list(st['side']), list(vq)
        run(NT - 1, NT)
        if kind == 'qkv': a('s_or_b64 vcc, vcc, s[54:55]')
        a(f"{'s_branch' if nopref else 's_cbranch_scc1' if kind == 'qkv' else 's_cbranch_vccnz'} {Lt0}")
        side_nt, vq_nt = list(st['side']), list(vq)
        st['dq'] = dma_ops()
        run(NT, N, nxt=True)
        assert not st['side']
        tr(5)
        a(f's_add_u32 {sI}, {sI}, 1')
        at = {k: list(v) for k, v in common_at.items()}
        last = 'st' + passes[-1]
        if carry:
            if kind == 'qkv':
                at[0] = [f'v_mov_b32 {vT}, {sI}']
                at[1] = [lambda: (wait('stv'), pub(0))]
                at[9] = [lambda: ringptr(a, sI, Rout, outq, t1)]
                at[12] = [lambda: ringptr(a, sI, Rout, outp, t1)]
            else:
                at[21] = [lambda: ringptr(a, sI, Rout, outp, t1), f'v_mov_b32 {vT}, {sI}']
                at[31] = [lambda: (wait(last), pub(0))]
            at[2] = [lambda: st.update(side=epi(len(passes) - 1))]
        else:
            a(f'v_mov_b32 {vT}, {sI}\ns_nop 9')
            for x in epi(0): emit(x)
            at[1] = [lambda: ringptr(a, sI, Rout, outp, t1)]
            at[cfg['PUB']] = [lambda: (wait(last), pub(0))]
        tr(6); tr.flush(sI)
        if TRACE2[0]: vq.append('x')
        tr(0); tr(7)
        run(0, NT - 1, at)
        assert not st['dq'] and st['side'] == side_mid
        check()
        assert not vq_mid or vq[-len(vq_mid):] == vq_mid, (vq, vq_mid)
        a(f's_branch {Lmid}\n{Lt0}:')
        st['side'] = side_nt; vq[:] = vq_nt
        run(NT, N)
        tr(5)
        a(f'''s_add_u32 {sI}, {sI}, 1
        v_add_u32 {vRd}, {sBuf}, {vL16}
        v_mov_b32 {vT}, {sI}
        s_nop 8''')
        for x in epi(len(passes) - 1): emit(x)
        ringptr(a, sI, Rout, outp + (outq if kind == 'qkv' else []), t1)
        if kind == 'qkv':
            wait('stv'); tr(6); pub(0)
            tr.flush(sI); tr(0)
            a(f's_cmp_eq_u32 {sI}, {nseg}\ns_cbranch_scc1 {Lfin}')
            poll(a, 'v9', 'v8', sFb, sNb, lb('L_bp'), first_issued=True)
            a(f's_branch {Litem}\n{Lfin}:\ns_waitcnt vmcnt(0)')
            pub(1)
        else:
            vm(f'buffer_load_dword {vFl}, {vF}, {WS}, {sFin} offen sc1', 'fl')
            wait('fl'); tr(6); pub(0)
            tr.flush(sI); tr(0)
            a(f'''s_cmp_eq_u32 {sI}, {nseg}
            s_cbranch_scc1 {Lfin}
            v_cmp_gt_u32 vcc, {sNeed}, {vFl}
            s_cbranch_vccz {Ldma}
            s_branch {Litem}
            {Lfin}:''')
    both(a, True if SCOPE == 'x' else local, loop)
```

```python
import struct
from common import *
def f32bits(x): return struct.unpack('<I', struct.pack('<f', x))[0]

def emit_r(a, kind, local=True, nseg=64, hook=None):
    lb = a.label
    t0, t1 = 's42', 's43'
    sI, sNeed, sP, sRes, sRaw, sNorm, sFin, sFout, sRow, sLd = ['s%d' % r for r in range(28, 38)]
    sPk = ['s44', 's45', 's46', 's47']
    vP, vX, vRow, vZ, vF, vFl, vT, vSw, vSr = ['v%d' % r for r in range(1, 10)]
    lane, tmp = 'v100', 'v101'
    npart = {'r0': 0, 'r1': 4, 'r2': 2}[kind]
    a(f'v_mov_b32 {lane}, v0\nv_mov_b32 {vZ}, 0\ns_mov_b32 {sSpin}, 0')
    emit_lanefn(a, vP, lane, lambda l: (l >> 4) * 4096 + ((l >> 3) & 1) * 512 + (l & 7) * 16, tmp)
    emit_lanefn(a, vX, lane, lambda l: (l >> 4) * 2048 + ((l >> 3) & 1) * 512 + (l & 7) * 16, tmp)
    emit_lanefn(a, vRow, lane, lambda l: (l >> 4) * 64 + ((l >> 3) & 1) * 8 + (l & 7) * 1024, tmp)
    a(f'''v_and_b32 {vSr}, 7, {lane}
    v_lshlrev_b32 {vSr}, 5, {vSr}
    s_lshl_b32 {t0}, {sW}, 3
    v_add_u32 {vSw}, {t0}, {vSr}
    s_lshl_b32 {t0}, {sW}, 13
    s_lshl_b32 {t1}, {sIdx}, 7
    s_add_u32 {sRes}, {t0}, {t1}
    s_mov_b32 {sP}, {sRes}
    s_lshl_b32 {sRow}, {sIdx}, 13
    s_lshl_b32 {t0}, {sW}, 8
    s_add_u32 {sRow}, {sRow}, {t0}
    s_lshl_b32 {sFout}, {sIdx}, 2
    s_add_u32 {sFout}, {sFout}, {sW}
    s_lshl_b32 {sFout}, {sFout}, 2''')
    if kind == 'r0':
        a(f'''s_add_u32 {sRaw}, {sRes}, {XR_OFF}
        s_add_u32 {sNorm}, {sRes}, {XN_OFF}
        s_add_u32 {sFout}, {sFout}, {F_XN}''')
        build_srd(a, 16, 0, 2 << 20)
        pstride, SCOPE = 0, 'x'
    elif kind == 'r1':
        a(f'''s_lshl_b32 {t1}, {sL}, 21
        s_add_u32 {sRes}, {sRes}, {t1}
        s_add_u32 {sRaw}, {sRes}, {X1_OFF}
        s_add_u32 {sNorm}, {sRes}, {X1N_OFF}
        s_add_u32 {sRes}, {sRes}, {XR_OFF}
        s_lshl_b32 {t1}, {sL}, 23
        s_add_u32 {sP}, {sP}, {t1}
        s_add_u32 {sP}, {sP}, {PW_OFF}
        s_lshl_b32 {t1}, {sL}, 8
        s_add_u32 {sFin}, {t1}, {F_PW}
        s_add_u32 {sFout}, {sFout}, {t1}
        s_add_u32 {sFout}, {sFout}, {F_X1}
        v_lshlrev_b32 {vF}, 2, {lane}''')
        pstride, SCOPE = 131072, 'l'
    else:
        a(f'''s_add_u32 {sRaw}, {sRes}, {XR_OFF + (2 << 20)}
        s_add_u32 {sNorm}, {sRes}, {XN_OFF + (2 << 20)}
        s_lshl_b32 {t1}, {sL}, 21
        s_add_u32 {sRes}, {sRes}, {t1}
        s_add_u32 {sRes}, {sRes}, {X1_OFF}
        s_lshl_b32 {t1}, {sL}, 22
        s_add_u32 {sP}, {sP}, {t1}
        s_add_u32 {sP}, {sP}, {PD_OFF}
        s_lshl_b32 {t1}, {sL}, 8
        s_add_u32 {sFin}, {t1}, {F_PD}
        s_add_u32 {sFout}, {sFout}, {t1}
        s_add_u32 {sFout}, {sFout}, {F_XN + 256}
        v_and_b32 {vF}, 31, {lane}
        v_lshlrev_b32 {vF}, 2, {vF}''')
        build_srd(a, 16, 11, 2 << 20)
        pstride, SCOPE = 65536, 'x'
    publish(a, vT, vZ, 0, sFout, 'sc1')
    bP, bRes, bRaw, bNorm, sFb, sNb, vFb, vB = 's48', 's49', 's50', 's51', 's53', 's54', 'v96', 'v97'
    a(f'''s_mov_b32 {bP}, {sP}
    s_mov_b32 {bRes}, {sRes}
    s_mov_b32 {bRaw}, {sRaw}
    s_mov_b32 {bNorm}, {sNorm}
    s_mov_b32 {sFb}, {F_XN + (512 if kind == 'r2' else 256)}
    s_mov_b32 {sNb}, 0
    v_mov_b32 {vFb}, 0
    v_and_b32 {vB}, 15, {lane}
    v_lshlrev_b32 {vB}, 2, {vB}''')
    Rres, Rout = {'r0': (1, RING['X']), 'r1': (RING['X'], RING['B']), 'r2': (RING['B'], RING['X'])}[kind]
    a('s_waitcnt vmcnt(0)\ns_barrier')
    if hook: hook('arrive')
    if kind == 'r1':
        if hook: hook('gate_all' if OPT['gate_w'] else 'gate')
        prewarm(a, RING['B'], sRaw, 32768, vX, [0, 1024], t0)
        prewarm(a, RING['B'], sNorm, 32768, vX, [0, 1024], t0)
    if hook and kind != 'r0': hook('wait')
    a(f'''s_mov_b32 s40, {f32bits(1 / 128)}
    s_mov_b32 s41, {f32bits(1e-5)}
    s_mov_b32 s38, 0xffff0000
    s_mov_b32 s39, {f32bits(128.0)}
    s_mov_b32 {sI}, 0
    s_mov_b32 {sNeed}, 1''')
    def loop(local):
        STO = '' if (local and SCOPE == 'l') else 'sc1'
        Litem, Lld, Lfin, Lout = lb('L_item'), lb('L_ld'), lb('L_fin'), lb('L_out')
        X = lambda i: f'v{16 + i}'
        R = lambda i: f'v{80 + i}'
        tr = Tracer(a, [92, 94, 20, 22, 56, 58, 60, 62], 'v98', 'v99')
        Lgo = lb('L_go')
        def ld():
            for p in range(2): a(f'buffer_load_dwordx4 {V(80+4*p,4)}, {vX}, {WS}, {sRes} offen offset:{p*1024} sc1')
            for kg in range(npart):
                a(f's_add_u32 {sPk[kg]}, {sP}, {kg * 32768}')
                for p in range(2): a(f'buffer_load_dwordx4 {V(48+8*kg+4*p,4)}, {vX}, {WS}, {sPk[kg]} offen offset:{p*1024} sc1 {OPT["nt_r"] if kind == "r1" else ""}')
            a(f'buffer_load_dword {vFl}, {vF}, {WS}, {sFin} offen sc1')
        xl = lambda: [a(f'buffer_load_dwordx2 {V(104+2*q,2)}, {vRow}, {SA}, {sRow} offen offset:{q*16} nt') for q in range(4)]
        if kind == 'r0': xl(); a('s_waitcnt vmcnt(0)')
        a(f'{Litem}:')
        if npart: poll(a, vFl, vF, sFin, sNeed, lb('L_poll'))
        a(f'{Lld}:')
        tr(1)
        if kind == 'r0':
            Lw = lb('L_r0w')
            a(f's_cmp_lg_u32 {sI}, 4\ns_cbranch_scc1 {Lw}')
            if hook: hook('wait')
            a(f'{Lw}:')
            for q in range(4): a(f'v_mov_b64 {V(80+2*q,2)}, {V(104+2*q,2)}')
            a(f's_cmp_lt_u32 {sNeed}, {nseg}\ns_cselect_b32 {t0}, 32768, 0\ns_add_u32 {sRow}, {sRow}, {t0}')
            xl()
        else:
            ld()
            a(f'{Lgo}:')
            tr(2)
            a(f's_waitcnt vmcnt({2 * npart + 1})')
            for i in range(8):
                a(f'v_lshlrev_b32 {X(2*i)}, 16, {R(i)}\nv_and_b32 {X(2*i+1)}, s38, {R(i)}')
            for kg in range(npart):
                a(f's_waitcnt vmcnt({2 * (npart - 1 - kg) + 1})')
                if kg == npart - 1: tr(3)
                for i in range(8):
                    a(f'v_lshlrev_b32 v{32+2*i}, 16, v{48+8*kg+i}\nv_and_b32 v{33+2*i}, s38, v{48+8*kg+i}')
                for i in range(0, 16, 2): a(f'v_pk_add_f32 v[{16+i}:{17+i}], v[{16+i}:{17+i}], v[{32+i}:{33+i}]')
            for i in range(8): a(f'v_cvt_pk_bf16_f32 {R(i)}, {X(2*i)}, {X(2*i+1)}')
        if kind == 'r2': a(f's_cmp_lg_u32 {sL}, 0\ns_cbranch_scc1 {Lout}')
        if kind != 'r1': poll(a, vFb, vB, sFb, sNb, lb('L_bp'), first_issued=True, sleep=2)
        for p in range(2): a(f'buffer_store_dwordx4 {V(80+4*p,4)}, {vX}, {WS}, {sRaw} offen offset:{p*1024} {STO}')
        for i in range(8):
            a(f'v_lshlrev_b32 {X(2*i)}, 16, {R(i)}\nv_and_b32 {X(2*i+1)}, s38, {R(i)}')
        def tree(src, dst):
            for i in range(0, 8, 2): a(f'v_pk_add_f32 v[{dst+i}:{dst+i+1}], v[{src+i}:{src+i+1}], v[{src+8+i}:{src+9+i}]')
            for i in range(0, 4, 2): a(f'v_pk_add_f32 v[{dst+i}:{dst+i+1}], v[{dst+i}:{dst+i+1}], v[{dst+4+i}:{dst+5+i}]')
            a(f'''v_pk_add_f32 v[{dst}:{dst+1}], v[{dst}:{dst+1}], v[{dst+2}:{dst+3}]
            v_add_f32 v10, v{dst}, v{dst+1}
            s_nop 1
            v_add_f32_dpp v10, v10, v10 row_ror:8 row_mask:0xf bank_mask:0xf
            v_mov_b32 v11, v10
            s_nop 1
            v_permlane16_swap_b32 v10, v11
            v_add_f32 v12, v10, v11
            v_add_f32 v13, v10, v11
            s_nop 1
            v_permlane32_swap_b32 v12, v13
            v_add_f32 v10, v12, v13''')
        tree(16, 48)
        a('v_mul_f32 v14, s40, v10')
        for i in range(0, 16, 2):
            a(f'v_pk_add_f32 v[{32+i}:{33+i}], v[{16+i}:{17+i}], v[14:15] op_sel_hi:[1,0] neg_lo:[0,1] neg_hi:[0,1]')
        for i in range(0, 16, 2): a(f'v_pk_mul_f32 v[{32+i}:{33+i}], v[{32+i}:{33+i}], v[{32+i}:{33+i}]')
        tree(32, 48)
        tr(4)
        a(f'''v_mov_b32 v15, v10
        s_mov_b64 exec, 0xff
        ds_write_b64 {vSw}, v[14:15]
        s_mov_b64 exec, -1
        s_waitcnt lgkmcnt(0)
        s_barrier
        ds_read_b128 v[48:51], {vSr}
        ds_read_b128 v[52:55], {vSr} offset:16
        v_xor_b32 {vSw}, 256, {vSw}
        v_xor_b32 {vSr}, 256, {vSr}
        s_waitcnt lgkmcnt(0)
        v_add_f32 v10, v48, v50
        v_add_f32 v11, v52, v54
        v_add_f32 v12, v49, v51
        v_add_f32 v13, v53, v55
        v_add_f32 v10, v10, v11
        v_add_f32 v12, v12, v13
        v_mul_f32 v10, 0.25, v10
        v_sub_f32 v48, v48, v10
        v_sub_f32 v50, v50, v10
        v_sub_f32 v52, v52, v10
        v_sub_f32 v54, v54, v10
        v_mul_f32 v48, v48, v48
        v_fmac_f32 v48, v50, v50
        v_fmac_f32 v48, v52, v52
        v_fmac_f32 v48, v54, v54
        v_fmac_f32 v12, s39, v48
        v_mov_b32 v13, s41
        v_fmac_f32 v13, {f32bits(1/512)}, v12
        v_rsq_f32 v12, v13
        s_nop 0
        v_mul_f32 v10, v10, v12'''.replace('0.25,', f'{f32bits(0.25)},'))
        for i in range(0, 16, 2):
            a(f'v_pk_fma_f32 v[{16+i}:{17+i}], v[{16+i}:{17+i}], v[12:13], v[10:11] op_sel_hi:[1,0,0] neg_lo:[0,0,1] neg_hi:[0,0,1]')
        for i in range(8): a(f'v_cvt_pk_bf16_f32 v{88+i}, {X(2*i)}, {X(2*i+1)}')
        for p in range(2): a(f'buffer_store_dwordx4 {V(88+4*p,4)}, {vX}, {WS}, {sNorm} offen offset:{p*1024} {STO}')
        tr(5)
        def adv():
            a(f'''s_add_u32 {sI}, {sI}, 1
            s_add_u32 {sNeed}, {sNeed}, 1
            s_sub_u32 {sNb}, {sNeed}, {RING['X']}
            s_max_i32 {sNb}, {sNb}, 0''')
            if kind == 'r2': a(f's_add_u32 {sRow}, {sRow}, 32768')
            if npart:
                ringptr(a, sI, RING['B'], [(sP, bP, pstride)], t0)
                ringptr(a, sI, Rres, [(sRes, bRes, 32768)], t0)
            ringptr(a, sI, Rout, [(sRaw, bRaw, 32768), (sNorm, bNorm, 32768)], t0)
        if kind != 'r1': a(f'buffer_load_dword {vFb}, {vB}, {WS}, {sFb} offen sc1')
        adv()
        def pub():
            publish(a, vT, vZ, sI, sFout, STO, 0)
        if npart:
            Lnr = lb('L_notready')
            a(f's_waitcnt vmcnt({4 + (kind != "r1")})\nv_cmp_gt_u32 vcc, {sNeed}, {vFl}\ns_cbranch_vccnz {Lnr}')
            tr(6); tr.flush(sI); tr(0); tr(1)
            ld()
            a(f's_waitcnt vmcnt({2 * npart + 3})')
            pub()
            a(f's_waitcnt vmcnt(1)\ns_branch {Lgo}\n{Lnr}:')
            a(f'buffer_load_dword {vFl}, {vF}, {WS}, {sFin} offen sc1')
        a('s_waitcnt vmcnt(0)')
        tr(6)
        pub()
        tr.flush(sI); tr(0)
        a(f's_cmp_eq_u32 {sI}, {nseg}\ns_cbranch_scc1 {Lfin}')
        if npart: a(f'v_cmp_gt_u32 vcc, {sNeed}, {vFl}\ns_cbranch_vccz {Lld}')
        a(f's_branch {Litem}')
        if kind == 'r2':
            a(f'{Lout}:')
            for q in range(4): a(f'buffer_store_dwordx2 {V(80+2*q,2)}, {vRow}, {SA}, {sRow} offen offset:{q*16}')
            adv()
            publish(a, vT, vZ, sI, sFout, 'sc1', 0)
            a(f's_cmp_eq_u32 {sI}, {nseg}\ns_cbranch_scc0 {Litem}')
        a(f'{Lfin}:')
    both(a, True if SCOPE == 'x' else local, loop)
```

```python
import sys, json
import common
from common import *
import chain, gemm, att, rrole

DEF_OPT = dict(common.OPT)
HEADER = open('cdna_kernels/' + NAME + '.s.ref').read().split('; Override launch')[0]

def gen(trace=False, local=None, fakexcc=False, chain_kw={}, qkv_kw={}, att_kw={}, tlb=0, diag=False, trace2=False, ring=None, gk={}, opt=None, gate=True):
    common.TRACE[0] = trace; common.TRACE2[0] = trace2
    common.RING.update(dict(A=8, B=8, X=32)); common.RING.update(ring or {})
    common.OPT.update(DEF_OPT); common.OPT.update(opt or {})
    a = Asm()
    if diag or trace: a('s_memrealtime s[6:7]')
    prologue(a, fake=fakexcc)
    if diag:
        a(f'''s_not_b32 s6, s6
        v_mov_b32 v1, 40
        v_mov_b32 v2, s6
        s_cmp_eq_u32 {sW}, 0
        s_cselect_b32 s6, 0, 0x1000
        s_mov_b64 exec, 1
        buffer_atomic_umax v2, v1, {DBG}, s6 offen
        s_mov_b64 exec, -1''')
    a(f'''s_mov_b32 {sSpin}, 0
    s_cmp_lt_u32 {sRANK}, 32
    s_cbranch_scc1 L_slot
    v_min_u32 v1, 7, v0
    v_lshlrev_b32 v1, 5, v1
    L_ovf:
    s_sleep 4
    buffer_load_dword v2, v1, {DBG}, 0 offen sc1
    s_waitcnt vmcnt(0)
    s_mov_b32 s42, 0''')
    for i in range(8): a(f'v_readlane_b32 s43, v2, {i}\ns_nop 3\ns_add_u32 s42, s42, s43')
    a(f'''s_add_u32 {sSpin}, {sSpin}, 0x1000
    s_cmp_ge_u32 {sSpin}, {SPIN}
    s_cbranch_scc1 L_fail
    s_cmp_lt_u32 s42, 256
    s_cbranch_scc1 L_ovf
    s_sub_u32 s42, {sRANK}, 32''')
    for i in range(8):
        a(f'''v_readlane_b32 s43, v2, {i}
        s_nop 3
        s_max_u32 s43, s43, 32
        s_sub_u32 s43, s43, 32
        s_cmp_gt_u32 {sXCC}, {i}
        s_cselect_b32 s43, s43, 0
        s_add_u32 s42, s42, s43''')
    for i in range(8):
        a(f'''v_readlane_b32 s43, v2, {i}
        s_nop 3
        s_min_u32 s43, s43, 32
        s_add_u32 {sRANK}, s43, s42
        s_mov_b32 {sXCC}, {i}
        s_cmp_lt_u32 {sRANK}, 32
        s_cbranch_scc1 L_slot
        s_sub_u32 s42, {sRANK}, 32''')
    a(f'''s_branch L_fail
    L_slot:''')
    if tlb:
        a(f'''v_lshlrev_b32 v1, {tlb}, v0
        s_lshl_b32 s42, {sW}, {tlb + 6}
        s_lshl_b32 s43, {sRANK}, {tlb + 8}
        s_add_u32 s42, s42, s43
        s_and_b32 s42, s42, 0xfffffff
        buffer_load_dword v2, v1, {WS}, s42 offen
        s_waitcnt vmcnt(0)''')
    a(f'''
    s_lshl_b32 {sSlot}, {sXCC}, 5
    s_add_u32 {sSlot}, {sSlot}, {sRANK}
    s_lshr_b32 {sL}, {sXCC}, 2''')
    if trace:
        a('v_mov_b32 v127, 0'); mark(a, 'v126', 'v127', 2, 1)
        a(f'''s_sub_u32 s98, s98, 0x200004
        v_mov_b32 v126, s6
        s_mov_b64 exec, 1
        buffer_store_dword v126, v127, {WS}, s98 offen
        s_mov_b64 exec, -1''')
    a(f'''
    s_and_b32 s42, {sXCC}, 3
    s_cmp_eq_u32 s42, 0
    s_cbranch_scc1 L_chain
    s_cmp_eq_u32 s42, 3
    s_cbranch_scc1 L_g3
    s_sub_u32 s42, s42, 1
    s_lshl_b32 s42, s42, 3
    s_cmp_lt_u32 {sIdx}, 16
    s_cbranch_scc0 L_g12
    s_add_u32 {sIdx}, {sIdx}, s42
    s_add_u32 {sIdx}, {sIdx}, s42
    s_branch L_qkv
    L_g12:
    s_cmp_lt_u32 {sIdx}, 24
    s_cselect_b32 s43, 16, 24
    s_sub_u32 s43, s43, s42
    s_cmp_lt_u32 {sIdx}, 24
    s_cbranch_scc0 L_g12w
    s_sub_u32 {sIdx}, {sIdx}, s43
    s_branch L_att
    L_g12w:
    s_sub_u32 {sIdx}, {sIdx}, s43
    s_branch L_w
    L_g3:
    s_cmp_lt_u32 {sIdx}, 14
    s_cbranch_scc1 L_u
    s_sub_u32 {sIdx}, {sIdx}, 14
    s_cmp_lt_u32 {sIdx}, 8
    s_cbranch_scc1 L_d
    s_sub_u32 {sIdx}, {sIdx}, 8
    s_cmp_lt_u32 {sIdx}, 4
    s_cbranch_scc1 L_r1
    s_sub_u32 {sIdx}, {sIdx}, 4
    s_cmp_lt_u32 {sIdx}, 4
    s_cbranch_scc1 L_r2
    s_sub_u32 {sIdx}, {sIdx}, 4
    s_lshl_b32 s42, {sL}, 1
    s_add_u32 {sIdx}, {sIdx}, s42
    s_branch L_r0
    L_fail:
    s_mov_b64 exec, -1
    v_mov_b32 v1, 60
    v_mov_b32 v2, 1
    s_mov_b64 exec, 1
    buffer_atomic_add v2, v1, {DBG}, 0 offen
    L_done:''')
    if trace: a('s_mov_b64 exec, -1\nv_mov_b32 v127, 0'); mark(a, 'v126', 'v127', 3, 1)
    if diag:
        a(f'''s_memrealtime s[6:7]
        s_waitcnt lgkmcnt(0)
        s_mov_b64 exec, 1
        v_mov_b32 v1, 44
        v_mov_b32 v2, s6
        buffer_atomic_umax v2, v1, {DBG}, 0 offen''')
    a(f'''L_end:
    s_endpgm''')
    def hook(w):
        if w in ('arrive', 'arrive0', 'gate_open'):
            L = a.label('L_na')
            if w == 'arrive': a(f's_cmp_lg_u32 {sW}, 0\ns_cbranch_scc1 {L}')
            if w == 'gate_open': a(f's_or_b32 s99, {sW}, {sL}\ns_cbranch_scc1 {L}')
            a(f'''v_mov_b32 v126, 1
            v_mov_b32 v127, {132 if w == 'gate_open' else 4}
            s_mov_b64 exec, 1
            buffer_atomic_add v126, v127, {DBG}, 0 offen
            s_mov_b64 exec, -1
            {L}:''')
        elif w in ('gate', 'gate_all'):
            if not gate: return
            L = a.label('L_gate')
            a(f'''s_cmp_eq_u32 {sL}, 0
            s_cselect_b32 s99, {0 if w == 'gate' else 32}, 64
            v_mov_b32 v126, 132
            s_cmp_eq_u32 s99, 0
            s_cbranch_scc1 {L}_ok
            {L}:
            s_sleep 8
            buffer_load_dword v127, v126, {DBG}, 0 offen sc1
            s_add_u32 {sSpin}, {sSpin}, 0x1000
            s_cmp_ge_u32 {sSpin}, {SPIN}
            s_cbranch_scc1 L_fail
            s_waitcnt vmcnt(0)
            v_cmp_gt_u32 vcc, s99, v127
            s_cbranch_vccnz {L}
            {L}_ok:''')
        elif w == 'wait':
            L = a.label('L_gw')
            a(f'''v_mbcnt_lo_u32_b32 v126, -1, 0
            v_mbcnt_hi_u32_b32 v126, -1, v126
            v_lshlrev_b32 v126, 5, v126
            v_cmp_gt_u32 vcc, 256, v126
            s_nop 1
            v_cndmask_b32 v126, 4, v126, vcc
            {L}:
            buffer_load_dword v127, v126, {DBG}, 0 offen sc1
            s_add_u32 {sSpin}, {sSpin}, 0x1000
            s_cmp_ge_u32 {sSpin}, {SPIN}
            s_cbranch_scc1 L_fail
            s_waitcnt vmcnt(0)
            v_readlane_b32 s42, v127, 8
            s_nop 3
            s_cmp_ge_u32 s42, 256
            s_cbranch_scc1 {L}_ok
            s_sleep 4
            s_branch {L}
            {L}_ok:
            buffer_load_dword v127, v126, {DBG}, 0 offen sc1
            s_waitcnt vmcnt(0)
            v_cmp_ne_u32 vcc, 32, v127
            s_nop 3
            s_and_b32 {sMode}, vcc_lo, 0xff''')
            if trace: a('v_mov_b32 v127, 0'); mark(a, 'v126', 'v127', 0, 1)
    def role(lab, fn):
        a(f'.p2align 6\n{lab}:'); fn(); a('s_branch L_done')
    role('L_r0', lambda: rrole.emit_r(a, 'r0', local=local, hook=hook))
    role('L_r1', lambda: rrole.emit_r(a, 'r1', local=local, hook=hook))
    role('L_r2', lambda: rrole.emit_r(a, 'r2', local=local, hook=hook))
    role('L_att', lambda: att.emit_att(a, local=local, hook=hook, **att_kw))
    role('L_chain', lambda: chain.emit_chain(a, local=local, hook=hook, **chain_kw))
    role('L_qkv', lambda: gemm.emit_gemm(a, 'qkv', local=local, hook=hook, **qkv_kw))
    role('L_w', lambda: gemm.emit_gemm(a, 'w', local=local, hook=hook, **gk.get('w', {})))
    role('L_u', lambda: gemm.emit_gemm(a, 'u', local=local, hook=hook, **gk.get('u', {})))
    role('L_d', lambda: gemm.emit_gemm(a, 'd', local=local, hook=hook, **gk.get('d', {})))
    return HEADER + single_kernel_file(a.text(), 256, 256, 163840)
if __name__ == '__main__':
    kw = json.loads(sys.argv[2]) if len(sys.argv) > 2 else {}
    open(sys.argv[1], 'w').write(gen(**kw))
```
